```python
import torch

def _softmax(x, axis=-1):
    return torch.softmax(x, dim=axis)

def _gelu(x):
    return torch.nn.functional.gelu(x, approximate='tanh')

def _silu(x):
    return torch.nn.functional.silu(x)

def _sigmoid(x):
    return torch.sigmoid(x)

def _layernorm(x, axis=-1, eps=1e-05):
    m = x.mean(dim=axis, keepdim=True)
    v = x.var(dim=axis, keepdim=True, unbiased=False)
    return (x - m) / torch.sqrt(v + eps)

def _scatter_add(tgt, idx, src, axis=0):
    return tgt.clone().index_add_(axis, idx, src)

def _segment_sum(src, seg, n):
    out = torch.zeros((n,) + src.shape[1:], dtype=src.dtype)
    return out.index_add_(0, seg, src)

def _pad(x, pw):
    flat = tuple((v for pair in reversed(pw) for v in pair))
    return torch.nn.functional.pad(x, flat)
kernel_name = 'adaLN_cond__ssm_conv_h3__mixer_s_mlp__prompt'

def setup_inputs():

    _w = lambda a: (lambda t: t.to(torch.bfloat16) if t.is_floating_point() else t)(torch.as_tensor(a))

    def _A_setup():
        B, S, D = (1, 2048, 512)
        ks = 4
        return {'q': _w((lambda *s: torch.randn(*s, dtype=torch.bfloat16) * 0.05)(B, S, D)), 'k': _w((lambda *s: torch.randn(*s, dtype=torch.bfloat16) * 0.8)(B, S, D)), 'v': _w((lambda *s: torch.randn(*s, dtype=torch.bfloat16) * 0.8)(B, S, D)), 'shift_k': _w((lambda *s: torch.randn(*s, dtype=torch.bfloat16) * 0.8)(D, ks) * 0.5), 'ssm_k': _w((lambda *s: torch.randn(*s, dtype=torch.bfloat16) * 0.8)(D, S) * (1.0 / S ** 0.5)), 'ssm_D': _w((lambda *s: torch.randn(*s, dtype=torch.bfloat16) * 0.8)(D))}
    _A_in = _A_setup()

    def _B_setup():
        B, S, D, F = (1, 2048, 512, 1792)
        return {'x': _w((lambda *s: torch.randn(*s, dtype=torch.bfloat16) * 0.05)(B, S, D)), 'w1': _w((lambda *s: torch.randn(*s, dtype=torch.bfloat16) * 3.2)(D, D) * D ** (-0.5)), 'w2': _w((lambda *s: torch.randn(*s, dtype=torch.bfloat16) * 3.2)(D, D) * D ** (-0.5)), 'w3': _w((lambda *s: torch.randn(*s, dtype=torch.bfloat16) * 3.2)(D, F) * D ** (-0.5)), 'w4': _w((lambda *s: torch.randn(*s, dtype=torch.bfloat16) * 3.2)(F, D) * F ** (-0.5))}
    _B_in = _B_setup()
    return {'A_q': _A_in['q'], 'A_k': _A_in['k'], 'A_v': _A_in['v'], 'A_shift_k': _A_in['shift_k'], 'A_ssm_k': _A_in['ssm_k'], 'A_ssm_D': _A_in['ssm_D'], 'B_x': _B_in['x'], 'B_w1': _B_in['w1'], 'B_w2': _B_in['w2'], 'B_w3': _B_in['w3'], 'B_w4': _B_in['w4'], 'c': _w((lambda *s: torch.randn(*s, dtype=torch.bfloat16) * 0.1)(1, 512) * 8.0), 'w_mod': _w((lambda *s: torch.randn(*s, dtype=torch.bfloat16) * 0.1)(512, 6 * 512) * 512 ** (-0.5) * 8.0)}

def reference(A_q, A_k, A_v, A_shift_k, A_ssm_k, A_ssm_D, B_x, B_w1, B_w2, B_w3, B_w4, c, w_mod):

    def _A_ref(q, k, v, shift_k, ssm_k, ssm_D):
        B, S, D = q.shape
        ks = shift_k.shape[-1]
        k_pad = _pad(k, ((0, 0), (ks - 1, 0), (0, 0)))
        k_shift = torch.zeros_like(k)
        for t in range(ks):
            k_shift = k_shift + k_pad[:, t:t + S, :] * shift_k[:, ks - 1 - t][None, None, :]
        kv = k_shift * v
        L = 2 * S
        kv_pad = _pad(kv, ((0, 0), (0, S), (0, 0)))
        kf_pad = _pad(ssm_k, ((0, 0), (0, S)))
        kv_f = (lambda x, axes=(-2, -1): torch.fft.rfft2(x.float(), dim=axes))(kv_pad[:, None, :, :], axes=(1, 2))
        kf_f = (lambda x, axes=(-2, -1): torch.fft.rfft2(x.float(), dim=axes))(kf_pad[:, None, :], axes=(1, 2))
        kf_f = (lambda x, *d: x.permute(*d))(kf_f, 1, 2, 0)
        y_f = kv_f * kf_f[None, :, :, :]
        y = (lambda x, s, axes=(-2, -1): torch.fft.irfft2(x, s=s, dim=axes).to(torch.bfloat16))(y_f, (1, L), axes=(1, 2))[:, 0, :S, :]
        y = y + kv * ssm_D[None, None, :]
        return q * y

    def _B_ref(x, w1, w2, w3, w4):
        B, S, D = x.shape
        h = _gelu(_layernorm(x, axis=-1) @ w1)
        c = D // 4
        g0 = _pad(h[:, :, 0 * c:1 * c], ((0, 0), (1, 0), (0, 0)))[:, :S, :]
        g1 = _pad(h[:, :, 1 * c:2 * c], ((0, 0), (0, 1), (0, 0)))[:, 1:, :]
        g2 = _pad(h[:, :, 2 * c:3 * c], ((0, 0), (2, 0), (0, 0)))[:, :S, :]
        g3 = _pad(h[:, :, 3 * c:], ((0, 0), (0, 2), (0, 0)))[:, 2:, :]
        hs = torch.concatenate([g0, g1, g2, g3], axis=-1) @ w2
        x1 = x + hs
        h2 = _gelu(_layernorm(x1, axis=-1) @ w3) @ w4
        return x1 + h2
    x = A_q
    mod = (_silu(c) @ w_mod).reshape(c.shape[0], 6, 1, -1)
    sa, ca, ga, sb, cb, gb = (mod[:, 0].clone(), mod[:, 1].clone(), mod[:, 2].clone(), mod[:, 3].clone(), mod[:, 4].clone(), mod[:, 5].clone())
    h = _layernorm(x, axis=-1) * (1 + ca) + sa
    x = x + ga * _A_ref(h, A_k, A_v, A_shift_k, A_ssm_k, A_ssm_D)
    h = _layernorm(x, axis=-1) * (1 + cb) + sb
    x = x + gb * _B_ref(h, B_w1, B_w2, B_w3, B_w4)
    return x
```

```python
import re

def _regs(op):
    op = op.strip()
    op = op.lstrip('-')
    m = re.match(r'^abs\((.*)\)$', op)
    if m: op = m.group(1)
    m = re.match(r'^\|(.*)\|$', op)
    if m: op = m.group(1)
    m = re.match(r'^([vsa])(\d+)$', op)
    if m: return [(m.group(1), int(m.group(2)))]
    m = re.match(r'^([vsa])\[(\d+):(\d+)\]$', op)
    if m: return [(m.group(1), i) for i in range(int(m.group(2)), int(m.group(3)) + 1)]
    if op == 'vcc': return [('s', 'vcc')]
    if op in ('vcc_lo', 'vcc_hi'): return [('s', 'vcc')]
    if op == 'exec': return [('s', 'exec')]
    if op == 'm0': return [('s', 'm0')]
    return []

TRANS = ('v_exp_f32', 'v_log_f32', 'v_rcp_f32', 'v_rsq_f32', 'v_sqrt_f32', 'v_sin_f32', 'v_cos_f32', 'v_rcp_iflag_f32')

class Ins:
    def __init__(self, text):
        self.text = text
        t = text.split(';')[0].strip()
        self.label = t.endswith(':')
        self.mn = ''
        self.wr = []; self.rd = []
        self.kind = 'other'
        self.states = 1
        if self.label or not t or t.startswith('.'):
            self.states = 0; self.kind = 'none'
            return
        parts = t.split(None, 1)
        mn = parts[0]; self.mn = mn
        rest = parts[1] if len(parts) > 1 else ''
        ops = []; cur = ''; depth = 0
        for ch in rest:
            if ch == '[': depth += 1
            if ch == ']': depth -= 1
            if ch == ',' and depth == 0:
                ops.append(cur); cur = ''
            else: cur += ch
        ops.append(cur)
        mods = ''
        if ops:
            last = ops[-1].strip().split(None, 1)
            ops[-1] = last[0] if last else ''
            mods = last[1] if len(last) > 1 else ''
        ops = [o.strip() for o in ops]
        self.ops = ops; self.mods = mods
        R = lambda i: _regs(ops[i]) if i < len(ops) else []
        if mn == 's_nop':
            self.states = int(ops[0], 0) + 1; self.kind = 'nop'; return
        if mn.startswith('v_mfma'):
            self.kind = 'mfma'
            self.wr = R(0); self.A = R(1); self.B = R(2); self.C = R(3)
            self.rd = self.A + self.B + self.C
            self.passes = 4 if '16x16x32' in mn else 8
            return
        if mn.startswith('v_'):
            self.kind = 'valu'
            base = mn.replace('_e32', '').replace('_e64', '').replace('_dpp', '').replace('_sdwa', '')
            self.base = base
            self.trans = base in TRANS
            self.dpp = ('_dpp' in mn) or ('row_' in mods) or ('quad_perm' in mods)
            self.dot = base.startswith('v_dot')
            self.perml = base.startswith('v_permlane')
            self.rdlane = base in ('v_readlane_b32', 'v_readfirstlane_b32')
            self.sdwa = '_sdwa' in mn
            if self.perml:
                self.wr = R(0) + R(1); self.rd = R(0) + R(1)
            else:
                self.wr = R(0)
                self.rd = [r for i in range(1, len(ops)) for r in R(i)]
                if base in ('v_fmac_f32', 'v_dot2c_f32_bf16', 'v_writelane_b32') or self.dpp:
                    self.rd += R(0)
                if base in ('v_add_co_u32', 'v_sub_co_u32', 'v_addc_co_u32'):
                    self.wr += R(1)
                if base == 'v_cndmask_b32' and len(ops) == 3:
                    self.rd += [('s', 'vcc')]
            return
        if mn.startswith('ds_'):
            self.kind = 'ds'
            if 'read' in mn or 'permute' in mn or 'swizzle' in mn:
                self.wr = R(0); self.rd = [r for i in range(1, len(ops)) for r in R(i)]
            else:
                self.rd = [r for i in range(len(ops)) for r in R(i)]
            return
        if mn.startswith('buffer_') or mn.startswith('global_'):
            self.kind = 'vmem'
            self.lds = bool(re.search(r'\blds\b', mods)) or '_lds_' in mn
            self.widestore = ('store_dwordx4' in mn or 'store_dwordx3' in mn)
            if 'load' in mn and not self.lds:
                self.wr = R(0); self.rd = [r for i in range(1, len(ops)) for r in R(i)]
            elif 'atomic' in mn:
                self.rd = [r for i in range(len(ops)) for r in R(i)]
                if 'sc0' in mods: self.wr = R(0)
            else:
                self.rd = [r for i in range(len(ops)) for r in R(i)]
            if self.widestore:
                self.data = R(0) if mn.startswith('buffer_') else R(1)
            if self.lds: self.rd += [('s', 'm0')]
            return
        if mn.startswith('s_'):
            self.kind = 'salu'
            if mn.startswith('s_cmp') or mn.startswith('s_cbranch') or mn in ('s_branch', 's_barrier', 's_waitcnt', 's_endpgm', 's_sleep', 's_setprio'):
                self.rd = [r for i in range(len(ops)) for r in R(i)]
            else:
                self.wr = R(0); self.rd = [r for i in range(1, len(ops)) for r in R(i)]
                if 'saveexec' in mn: self.wr += [('s', 'exec')]
            return

def need(p, c):
    n = 0
    pw = set(p.wr); cr = set(c.rd); cw = set(c.wr)
    pwv = {r for r in pw if r[0] in 'va'}; pws = {r for r in pw if r[0] == 's'}
    if p.kind == 'valu':
        if c.kind == 'mfma' and pwv & cr: n = max(n, 2)
        if c.kind == 'valu':
            if c.dpp and pwv & cr: n = max(n, 2)
            if c.perml and pwv & cr: n = max(n, 2)
            if c.rdlane and pwv & cr: n = max(n, 1)
            if p.trans and not c.trans and pwv & cr: n = max(n, 1)
            if p.trans and c.trans and pwv & cr: n = max(n, 1)
            if p.sdwa and pwv & (cr | cw): n = max(n, 1)
            if pws & cr:
                n = max(n, 4 if c.base in ('v_readlane_b32', 'v_writelane_b32') else 2)
            if p.dot and pwv & (cr | cw):
                if c.dot and c.base == p.base:
                    ab = set(_regs(c.ops[1]) + _regs(c.ops[2]))
                    if pwv & ab: n = max(n, 3)
                else: n = max(n, 3)
        if p.dot and c.kind in ('vmem', 'ds', 'mfma') and pwv & cr: n = max(n, 3)
        if p.trans and c.kind in ('vmem', 'ds') and pwv & cr: n = max(n, 1)
        if c.kind == 'vmem' and pws & cr: n = max(n, 5)
        if c.kind == 'salu' and pws & cr: n = max(n, 1)
        if ('s', 'exec') in pw and c.kind in ('mfma',): n = max(n, 4)
    if p.kind == 'mfma':
        big = {4: 8, 8: 12}[p.passes]; ovl = {4: 6, 8: 10}[p.passes]; war = {4: 3, 8: 7}[p.passes]
        if c.kind == 'mfma':
            if pw & set(c.A + c.B): n = max(n, big)
            if pw & set(c.C):
                if not (c.C == p.wr and c.passes == p.passes): n = max(n, ovl)
            elif pw & cw: n = max(n, ovl)
        elif c.kind in ('valu', 'vmem', 'ds'):
            if pw & (cr | cw): n = max(n, big)
            if c.kind == 'valu' and set(p.C) & cw: n = max(n, war)
    if p.kind == 'salu':
        if ('s', 'm0') in pw and c.kind == 'vmem' and c.lds: n = max(n, 1)
    if p.kind == 'vmem' and p.widestore:
        if set(p.data) & cw: n = max(n, 2 if c.kind == 'valu' else 1)
    return n

def pad(lines):
    out = []; hist = []
    for l in lines:
        ins = Ins(l)
        if ins.kind == 'none':
            out.append(l); continue
        dist = 0; req = 0
        for p in reversed(hist):
            if dist >= 20: break
            if p.kind != 'nop':
                nd = need(p, ins) - dist
                if nd > req: req = nd
            dist += p.states
        while req > 0:
            k = min(req, 16)
            nop = Ins(f"s_nop {k-1}")
            out.append(f"    s_nop {k-1}"); hist.append(nop); req -= k
        out.append(l); hist.append(ins)
        if len(hist) > 40: hist = hist[-30:]
    return out

class K:
    def __init__(self, name, vgpr=128, sgpr=96, agpr=0):
        self.name = name; self.lines = []; self.vgpr = vgpr; self.sgpr = sgpr; self.agpr = agpr
        self.nlabel = 0
    def __call__(self, s):
        for l in s.strip("\n").split("\n"):
            l = l.strip()
            if not l: continue
            self.lines.append(l if l.split(';')[0].strip().endswith(":") else "    " + l)
    def label(self, base="L"):
        self.nlabel += 1
        return f"{self.name}_{base}{self.nlabel}"
    def text(self):
        h = f".globl {self.name}\n.p2align 8\n.type {self.name},@function\n{self.name}:\n"
        return h + "\n".join(pad(self.lines)) + "\n"
    def desc(self):
        acc = (self.vgpr + 3) // 4 * 4
        nfv = acc + self.agpr if self.agpr else self.vgpr
        return f""".p2align 6
.amdhsa_kernel {self.name}
  .amdhsa_next_free_vgpr {nfv}
  .amdhsa_next_free_sgpr {self.sgpr}
  .amdhsa_accum_offset {acc}
  .amdhsa_group_segment_fixed_size 0
  .amdhsa_kernarg_size 128
  .amdhsa_user_sgpr_count 2
  .amdhsa_user_sgpr_kernarg_segment_ptr 1
  .amdhsa_system_sgpr_workgroup_id_x 1
.end_amdhsa_kernel
"""

def build(launches, kernels, header=""):
    s = header
    for (n, g, b, l) in launches:
        s += f"; @launch kernel={n} grid=({g},1,1) block=({b},1,1) lds={l}\n"
    s += '.amdgcn_target "amdgcn-amd-amdhsa--gfx950"\n.text\n'
    for k in kernels:
        s += k.text()
    s += '.section .rodata,"a"\n'
    for k in kernels:
        s += k.desc()
    return s

ARG = dict(A_q=0, A_k=8, A_v=16, A_shift_k=24, A_ssm_k=32, A_ssm_D=40, B_x=48, B_w1=56, B_w2=64, B_w3=72, B_w4=80, c=88, w_mod=96, out=104, dbg=112, ws=120)
```

```python
import sys
from asmlib import *

KVT = 0x000000; KVT_SZ = 0x200000
Y2B = 0x200000; Y2B_SZ = 64 * 40960
MODP = 0x480000
MODC = 0x4E0000
FLAGS = 0x4F0000
HS = 0x500000
HB = 0x700000
X1 = 0x900000
X1P = 0xB00000
STAT = 0xD00000
H3 = 0xE00000
WS_END = 0x1500000

def P(n):
    return 64 + ARG[n] // 4

LOG2E = 1.4426950408889634
import struct
def f2u(x): return struct.unpack('<I', struct.pack('<f', x))[0]
def hx(x): return "0x%08x" % f2u(x)

def srd(k, d, ptr, size, off=0):
    if off:
        k(f"s_add_u32 s{d}, s{ptr}, {off}\ns_addc_u32 s{d+1}, s{ptr+1}, 0")
    else:
        k(f"s_mov_b32 s{d}, s{ptr}\ns_mov_b32 s{d+1}, s{ptr+1}")
    k(f"s_mov_b32 s{d+2}, {size}\ns_mov_b32 s{d+3}, 0x20000")

def srd_s(k, d, ptr, size, soff):
    k(f"s_add_u32 s{d}, s{ptr}, s{soff}\ns_addc_u32 s{d+1}, s{ptr+1}, 0")
    k(f"s_mov_b32 s{d+2}, {size}\ns_mov_b32 s{d+3}, 0x20000")

def entry(k):
    k(f"""
    s_cmp_ge_u32 s2, 256
    s_cbranch_scc1 {k.name}_end
    s_load_dwordx16 s[64:79], s[0:1], 0
    s_load_dwordx16 s[80:95], s[0:1], 64
    v_lshrrev_b32 v1, 6, v0
    s_and_b32 s4, s2, 7
    s_lshr_b32 s5, s2, 3
    v_readfirstlane_b32 s6, v1
    v_and_b32 v1, 63, v0
    """)

def finish(k):
    k(f"{k.name}_end:\ns_endpgm")

def unpack(k, dlo, dhi, src):
    k(f"v_lshlrev_b32 v{dlo}, 16, v{src}\nv_and_b32 v{dhi}, 0xffff0000, v{src}")

def pr(r): return f"v[{r}:{r+1}]"
def q4(r): return f"v[{r}:{r+3}]"

TT = 0
MP = 9216
UR = 25600; UR_CH = 4608
KC = 34816; KC_CS = 4160; KC_CH = 8 * 4160
K1_LDS = KC + 2 * KC_CH
RED1 = TT

def phase_T_issue(k):
    k(f"""
    v_and_b32 v4, 31, v0              ; cp
    v_lshrrev_b32 v5, 5, v0           ; rg
    s_lshl_b32 s3, s5, 16             ; 64 i * 1024
    s_lshl_b32 s7, s4, 7              ; 128 j
    s_add_u32 s3, s3, s7
    v_lshlrev_b32 v2, 12, v5          ; 4 rg * 1024
    v_lshl_add_u32 v2, v4, 2, v2
    v_add_u32 v2, s3, v2
    v_add_u32 v3, 0xfffff400, v2      ; -3072
    s_lshl_b32 s3, s4, 9
    v_lshl_add_u32 v6, v4, 4, s3
    v_lshrrev_b32 v7, 3, v1
    v_lshlrev_b32 v7, 10, v7
    v_and_b32 v8, 7, v1
    v_lshl_add_u32 v7, v8, 4, v7
    v_add_u32 v7, s7, v7
    s_lshl_b32 s3, s5, 4
    s_lshl_b32 s21, s6, 1
    s_add_u32 s3, s3, s21             ; row = 16 i + 2 w
    s_mul_i32 s21, s3, 6144
    s_add_u32 s22, s21, 6144
    s_lshl_b32 s3, s3, 1
    s_waitcnt lgkmcnt(0)
    s_load_dword s20, s[{P('c')}:{P('c')+1}], s3
    """)
    srd(k, 8, P('A_k'), 0x200000)
    srd(k, 12, P('A_v'), 0x200000)
    srd(k, 16, P('A_shift_k'), 4096)
    srd(k, 24, P('w_mod'), 512 * 6144)
    srd(k, 28, P('ws'), WS_END)
    for r in range(3): k(f"buffer_load_dword v{10+r}, v3, s[8:11], 0 offen offset:{1024*r}")
    for r in range(4): k(f"buffer_load_dword v{13+r}, v2, s[8:11], 0 offen offset:{1024*r}")
    for r in range(4): k(f"buffer_load_dword v{17+r}, v2, s[12:15], 0 offen offset:{1024*r}")
    k("buffer_load_dwordx4 v[24:27], v6, s[16:19], 0 offen")
    k("buffer_load_dwordx4 v[28:31], v7, s[24:27], s21 offen")
    k("buffer_load_dwordx4 v[32:35], v7, s[24:27], s22 offen")

def phase_T_compute(k, nafter):
    k(f"""
    s_waitcnt lgkmcnt(0)
    s_lshl_b32 s21, s20, 16
    s_and_b32 s22, s20, 0xffff0000
    v_mov_b32 v96, s21
    v_mov_b32 v97, s22
    v_mul_f32 v98, {hx(-LOG2E)}, v96
    v_mul_f32 v99, {hx(-LOG2E)}, v97
    v_exp_f32 v98, v98
    v_exp_f32 v99, v99
    v_add_f32 v98, 1.0, v98
    v_add_f32 v99, 1.0, v99
    v_rcp_f32 v98, v98
    v_rcp_f32 v99, v99
    v_mul_f32 v96, v96, v98
    v_mul_f32 v97, v97, v99
    v_cvt_pk_bf16_f32 v98, v96, v97
    """)
    unpack(k, 96, 97, 98)
    k(f"""
    v_mul_u32_u24 v36, 288, v4
    v_lshlrev_b32 v37, 3, v5
    v_sub_u32 v36, v36, v37
    v_add_u32 v36, {TT + 120}, v36
    v_lshrrev_b32 v37, 3, v0
    v_and_b32 v38, 7, v0
    v_mul_u32_u24 v39, 144, v37
    v_lshl_add_u32 v39, v38, 4, v39
    v_lshlrev_b32 v37, 12, v37
    v_lshl_add_u32 v37, v38, 4, v37
    s_lshl_b32 s3, s6, 11
    v_lshl_add_u32 v38, v1, 5, s3
    s_waitcnt vmcnt({nafter + 2})
    """)
    for r in range(7): unpack(k, 40 + 2 * r, 41 + 2 * r, 10 + r)
    for r in range(4): unpack(k, 54 + 2 * r, 55 + 2 * r, 17 + r)
    unpack(k, 62, 64, 24); unpack(k, 66, 68, 25); unpack(k, 63, 65, 26); unpack(k, 67, 69, 27)
    for r in range(4):
        k(f"v_pk_mul_f32 {pr(70+2*r)}, {pr(40+2*(r+3))}, {pr(62)}")
    for tau in range(1, 4):
        for r in range(4):
            k(f"v_pk_fma_f32 {pr(70+2*r)}, {pr(40+2*(r+3-tau))}, {pr(62+2*tau)}, {pr(70+2*r)}")
    for r in range(4):
        k(f"v_pk_mul_f32 {pr(70+2*r)}, {pr(70+2*r)}, {pr(54+2*r)}")
    k(f"""
    v_cvt_pk_bf16_f32 v40, v76, v74
    v_cvt_pk_bf16_f32 v41, v72, v70
    v_cvt_pk_bf16_f32 v42, v77, v75
    v_cvt_pk_bf16_f32 v43, v73, v71
    ds_write_b64 v36, v[40:41]
    ds_write_b64 v36, v[42:43] offset:144
    s_waitcnt vmcnt({nafter})
    """)
    for e in range(4): unpack(k, 80 + 2 * e, 81 + 2 * e, 28 + e)
    for e in range(4): unpack(k, 88 + 2 * e, 89 + 2 * e, 32 + e)
    for e in range(4):
        k(f"v_pk_mul_f32 {pr(80+2*e)}, {pr(80+2*e)}, {pr(96)} op_sel_hi:[1,0]")
    for e in range(4):
        k(f"v_pk_fma_f32 {pr(80+2*e)}, {pr(88+2*e)}, {pr(96)}, {pr(80+2*e)} op_sel:[0,1,0] op_sel_hi:[1,1,1]")
    L = k.label("nomod")
    k(f"""
    ds_write_b128 v38, v[80:83] offset:{MP}
    ds_write_b128 v38, v[84:87] offset:{MP + 16}
    s_waitcnt lgkmcnt(0)
    s_barrier
    ds_read_b128 v[40:43], v39 offset:{TT}
    s_lshl_b32 s3, s4, 18               ; 64 j * 4096
    s_lshl_b32 s7, s5, 7
    s_sub_u32 s3, s3, s7
    s_add_u32 s3, s3, {KVT + 3968}
    s_cmp_ge_u32 s6, 6
    s_cbranch_scc1 {L}
    v_lshlrev_b32 v44, 2, v0
    v_add_u32 v45, {MP}, v44
    """)
    for w in range(8): k(f"ds_read_b32 v{48+w}, v45 offset:{2048*w}")
    k(f"""
    s_lshl_b32 s7, s4, 5
    s_add_u32 s7, s7, s5
    s_mul_i32 s7, s7, 1536
    s_add_u32 s7, s7, {MODP}
    s_waitcnt lgkmcnt(0)
    v_add_f32 v48, v48, v49
    v_add_f32 v50, v50, v51
    v_add_f32 v52, v52, v53
    v_add_f32 v54, v54, v55
    v_add_f32 v48, v48, v50
    v_add_f32 v52, v52, v54
    v_add_f32 v48, v48, v52
    buffer_store_dword v48, v44, s[28:31], s7 offen
    {L}:
    s_waitcnt lgkmcnt(0)
    buffer_store_dwordx4 v[40:43], v37, s[28:31], s3 offen
    """)

def phase_C_pre(k):
    k(f"""
    s_lshl_b32 s3, s4, 6
    s_lshl_b32 s7, s5, 1
    s_add_u32 s36, s3, s7               ; d0 = 64 j + 2 i
    s_lshl_b32 s3, s36, 12
    """)
    srd_s(k, 32, P('A_ssm_k'), 8192, 3)
    k(f"""
    s_lshl_b32 s3, s6, 1
    s_sub_u32 s3, s3, 14                ; 2 (a - 7)
    v_lshl_add_u32 v100, v1, 4, s3
    s_mul_i32 s7, s6, {KC_CS}
    s_add_u32 s7, s7, {KC + 16}
    """)
    for c2 in range(2):
        for q in range(4):
            k(f"s_add_u32 m0, s7, {c2 * KC_CH + q * 1024}")
            if c2 or q:
                k(f"v_add_u32 v101, {4096 * c2 + 1024 * q}, v100")
                k("buffer_load_dwordx4 v101, s[32:35], 0 offen lds")
            else:
                k("buffer_load_dwordx4 v100, s[32:35], 0 offen lds")
    k(f"""
    v_and_b32 v102, 15, v1
    v_lshrrev_b32 v103, 4, v1
    s_sub_u32 s3, s6, 15
    v_add_u32 v104, s3, v102            ; idx
    v_lshlrev_b32 v105, 1, v104
    v_lshl_add_u32 v105, v103, 12, v105
    v_cmp_gt_i32 vcc, 0, v104
    v_mov_b32 v106, 0x7ffffff0
    v_cndmask_b32 v105, v105, v106, vcc
    buffer_load_ushort v107, v105, s[32:35], 0 offen
    v_mul_u32_u24 v108, {KC_CH}, v103
    v_lshl_add_u32 v108, v102, 1, v108
    s_sub_u32 s7, s7, 16
    v_add_u32 v108, s7, v108
    """)

def phase_C_pre2(k):
    k(f"""
    v_cmp_gt_u32 vcc, 32, v1
    s_and_saveexec_b64 s[38:39], vcc
    ds_write_b16 v108, v107
    s_mov_b64 exec, s[38:39]
    """)
    L = k.label("nozero")
    k(f"""
    s_cmp_lg_u32 s6, 0
    s_cbranch_scc1 {L}
    v_lshrrev_b32 v103, 5, v1
    v_mul_u32_u24 v103, {UR_CH}, v103
    v_and_b32 v102, 31, v1
    v_lshl_add_u32 v103, v102, 4, v103
    v_add_u32 v103, {UR + 4096}, v103
    v_mov_b32 v104, 0
    v_mov_b32 v105, 0
    v_mov_b32 v106, 0
    v_mov_b32 v107, 0
    ds_write_b128 v103, v[104:107]
    {L}:
    """)

def conv_body(k, tg, dh):
    tiles = [[0, 3, 4, 7], [1, 2, 5, 6]][tg]
    tmax = tiles[-1]
    def Areg(s, ip): return 32 + 64 * s + 4 * ip
    def Breg(s, e): return 64 + 64 * s + 4 * e
    def loads(s, dl):
        d = 4 * dh + dl
        L = []
        for x in range(tmax + 1):
            L.append(f"ds_read_b128 {q4(Areg(s, x))}, v2 offset:{64*d + 512*x}")
            L.append(f"ds_read_b128 {q4(Breg(s, tmax - x))}, v3 offset:{64*d + 512*(7-(tmax-x))}")
        return L
    for l in loads(0, 0): k(l)
    for dl in range(4):
        s = dl & 1
        nxt = loads(1 - s, dl + 1) if dl < 3 else []
        k("s_waitcnt lgkmcnt(0)")
        mf = []
        for ip in range(tmax + 1):
            for ti, t in enumerate(tiles):
                if ip <= t:
                    c = q4(8 + 4 * ti) if (dl or ip) else "0"
                    mf.append(f"v_mfma_f32_16x16x32_bf16 {q4(8+4*ti)}, {q4(Areg(s, ip))}, {q4(Breg(s, t - ip))}, {c}")
        for n, m in enumerate(mf):
            k(m)
            if n < len(nxt): k(nxt[n])
    keep = [2 * dh, 2 * dh + 1]; send = [2 * (1 - dh), 2 * (1 - dh) + 1]
    k(f"""
    ds_write_b128 v4, {q4(8+4*send[0])} offset:{RED1}
    ds_write_b128 v4, {q4(8+4*send[1])} offset:{RED1 + 1024}
    """)
    for n, ti in enumerate(keep):
        t = tiles[ti]
        k(f"ds_read_b64 {pr(32+2*n)}, v6 offset:{512*(7-t)}")
    k(f"""
    s_waitcnt lgkmcnt(0)
    s_barrier
    ds_read_b128 v[40:43], v5 offset:{RED1}
    ds_read_b128 v[44:47], v5 offset:{RED1 + 1024}
    """)
    for n, ti in enumerate(keep):
        a = 8 + 4 * ti
        b = 48 + 4 * n
        unpack(k, b + 3, b + 2, 32 + 2 * n)
        unpack(k, b + 1, b + 0, 33 + 2 * n)
        k(f"v_pk_fma_f32 {pr(a)}, {pr(b)}, {pr(24)}, {pr(a)} op_sel_hi:[1,0,1]")
        k(f"v_pk_fma_f32 {pr(a+2)}, {pr(b+2)}, {pr(24)}, {pr(a+2)} op_sel_hi:[1,0,1]")
    k("s_waitcnt lgkmcnt(0)")
    for n, ti in enumerate(keep):
        a = 8 + 4 * ti; t = tiles[ti]
        k(f"""
        v_pk_add_f32 {pr(a)}, {pr(a)}, {pr(40+4*n)}
        v_pk_add_f32 {pr(a+2)}, {pr(a+2)}, {pr(42+4*n)}
        v_cvt_pk_bf16_f32 v{56+2*n}, v{a}, v{a+1}
        v_cvt_pk_bf16_f32 v{57+2*n}, v{a+2}, v{a+3}
        v_add_u32 v{60+2*n}, {t * 8 * 40960}, v26
        v_add_u32 v{61+2*n}, {t * 8 * 40960}, v27
        buffer_store_dwordx2 {pr(56+2*n)}, v{60+2*n}, s[40:43], 0 offen
        buffer_store_dwordx2 {pr(56+2*n)}, v{61+2*n}, s[40:43], 0 offen
        """)

def phase_C_main(k, sc=""):
    k(f"""
    s_lshl_b32 s3, s36, 12
    s_add_u32 s3, s3, {KVT}
    v_lshlrev_b32 v2, 4, v0
    buffer_load_dwordx4 v[8:11], v2, s[28:31], s3 offen {sc}
    s_lshl_b32 s3, s36, 1
    s_load_dword s37, s[{P('A_ssm_D')}:{P('A_ssm_D')+1}], s3
    """)
    L2 = k.label("nomod2a")
    k(f"""
    s_cmp_lg_u32 s6, 7
    s_cbranch_scc1 {L2}
    v_and_b32 v112, 31, v1
    v_mul_u32_u24 v112, 1536, v112
    v_lshrrev_b32 v113, 5, v1
    v_lshl_add_u32 v112, v113, 2, v112
    s_mul_i32 s3, s4, {32 * 1536}
    s_lshl_b32 s7, s5, 3
    s_add_u32 s3, s3, s7
    s_add_u32 s3, s3, {MODP}
    """)
    for v in range(6): k(f"buffer_load_dword v{114+v}, v112, s[28:31], s3 offen offset:{256*v} {sc}")
    k(f"{L2}:")
    srd(k, 40, P('ws'), Y2B_SZ, Y2B)
    k(f"""
    v_lshrrev_b32 v3, 8, v0
    v_mul_u32_u24 v3, {UR_CH}, v3
    v_and_b32 v4, 255, v0
    v_lshl_add_u32 v3, v4, 4, v3
    v_add_u32 v12, {UR}, v3
    s_lshr_b32 s44, s6, 2                ; c2
    v_and_b32 v28, 15, v1                ; b / n
    v_lshrrev_b32 v29, 4, v1             ; slab / g4
    v_and_b32 v2, 7, v28
    v_mul_u32_u24 v2, {KC_CS}, v2
    v_lshrrev_b32 v3, 3, v28
    v_add_u32 v3, v3, v29
    v_lshl_add_u32 v2, v3, 4, v2
    s_mul_i32 s3, s44, {KC_CH}
    s_add_u32 s3, s3, {KC}
    v_add_u32 v2, s3, v2
    s_mul_i32 s3, s44, {UR_CH}
    s_add_u32 s3, s3, {UR + 480}
    v_lshlrev_b32 v3, 4, v29
    v_lshlrev_b32 v4, 5, v28
    v_sub_u32 v3, v3, v4
    v_add_u32 v3, s3, v3
    s_add_u32 s3, s3, {4088 - 3584 - 480}
    v_lshlrev_b32 v6, 3, v29
    v_add_u32 v6, v6, v4
    v_sub_u32 v6, s3, v6
    s_lshl_b32 s3, s6, 11
    v_lshl_add_u32 v4, v1, 4, s3
    s_xor_b32 s3, s3, 4096
    v_lshl_add_u32 v5, v1, 4, s3
    v_lshrrev_b32 v26, 1, v28
    v_mul_u32_u24 v26, 40960, v26
    v_and_b32 v27, 1, v28
    v_lshlrev_b32 v27, 2, v27
    v_add_u32 v27, v27, v29              ; within/4 = 4 (n&1) + g4   (0..7)
    v_lshl_add_u32 v26, v27, 3, v26
    s_add_u32 s3, s36, s44
    s_mul_i32 s3, s3, 80
    s_add_u32 s3, s3, 8
    v_add_u32 v26, s3, v26
    v_add_u32 v30, {40960 - 64}, v26
    v_add_u32 v31, {(-40960 + 64) & 0xffffffff}, v26
    v_cmp_eq_u32 vcc, 7, v27
    v_cmp_eq_u32 s[46:47], 0, v27
    v_mov_b32 v27, 0x80000000
    v_cndmask_b32 v27, v27, v30, vcc
    v_cndmask_b32 v27, v27, v31, s[46:47]
    s_waitcnt lgkmcnt(0)
    s_lshl_b32 s3, s37, 16
    s_and_b32 s7, s37, 0xffff0000
    s_cmp_eq_u32 s44, 0
    s_cselect_b32 s3, s3, s7
    v_mov_b32 v24, s3                    ; D
    """)
    L3 = k.label("nomod2b")
    k(f"""
    s_waitcnt vmcnt(0)
    ds_write_b128 v12, v[8:11]
    s_cmp_lg_u32 s6, 7
    s_cbranch_scc1 {L3}
    """)
    for rot in (1, 2, 4, 8):
        for v in range(6):
            k(f"v_add_f32_dpp v{114+v}, v{114+v}, v{114+v} row_ror:{rot} row_mask:0xf bank_mask:0xf")
    for v in range(6): k(f"v_mov_b32 v{120+v}, v{114+v}")
    for v in range(6): k(f"v_permlane16_swap_b32 v{114+v}, v{120+v}")
    for v in range(6): k(f"v_add_f32 v{114+v}, v{114+v}, v{120+v}")
    for p in range(3):
        k(f"v_cvt_pk_bf16_f32 v{120+p}, v{114+2*p}, v{115+2*p}")
    for p in range(3): unpack(k, 114 + 2 * p, 115 + 2 * p, 120 + p)
    k(f"""
    v_add_f32 v115, 1.0, v115
    v_add_f32 v118, 1.0, v118
    v_cvt_pk_bf16_f32 v120, v115, v118
    """)
    unpack(k, 115, 118, 120)
    k(f"""
    v_mul_f32 v120, v116, v115
    v_mul_f32 v121, v116, v114
    v_and_b32 v112, 31, v1
    v_lshlrev_b32 v113, 2, v113
    v_cmp_ne_u32 vcc, 0, v112
    v_mov_b32 v112, 0x80000000
    v_cndmask_b32 v113, v113, v112, vcc
    s_lshl_b32 s3, s36, 2
    s_add_u32 s3, s3, {MODC}
    s_add_u32 s7, s3, 4096
    s_add_u32 s45, s3, 8192
    buffer_store_dword v120, v113, s[28:31], s3 offen
    buffer_store_dword v121, v113, s[28:31], s3 offen offset:2048
    buffer_store_dword v118, v113, s[28:31], s7 offen
    buffer_store_dword v117, v113, s[28:31], s7 offen offset:2048
    buffer_store_dword v119, v113, s[28:31], s45 offen
    {L3}:
    s_waitcnt lgkmcnt(0)
    s_barrier
    """)
    labs = [k.label(f"cv{x}_") for x in range(4)]
    Lend = k.label("cvend")
    k(f"""
    s_and_b32 s3, s6, 3
    s_cmp_eq_u32 s3, 1
    s_cbranch_scc1 {labs[1]}
    s_cmp_eq_u32 s3, 2
    s_cbranch_scc1 {labs[2]}
    s_cmp_eq_u32 s3, 3
    s_cbranch_scc1 {labs[3]}
    """)
    for x in range(4):
        if x: k(f"{labs[x]}:\ns_nop 7\ns_nop 7")
        conv_body(k, x & 1, x >> 1)
        if x < 3: k(f"s_branch {Lend}")
    k(f"{Lend}:")


GC1 = -2.0 * LOG2E * 0.7978845608028654
GC2 = GC1 * 0.044715

def gelu_consts(k):
    k(f"s_mov_b32 s52, {hx(GC2)}\ns_mov_b32 s53, {hx(GC2)}")

def gelu_pairs(k, regs, tmp, c1):
    n = len(regs)
    for i, r in enumerate(regs): k(f"v_pk_mul_f32 {pr(tmp+2*i)}, {pr(r)}, {pr(r)}")
    for i, r in enumerate(regs): k(f"v_pk_fma_f32 {pr(tmp+2*i)}, {pr(tmp+2*i)}, s[52:53], {pr(c1)} op_sel_hi:[1,1,0]")
    for i, r in enumerate(regs): k(f"v_pk_mul_f32 {pr(tmp+2*i)}, {pr(tmp+2*i)}, {pr(r)}")
    for i in range(2 * n): k(f"v_exp_f32 v{tmp+i}, v{tmp+i}")
    for i, r in enumerate(regs): k(f"v_pk_add_f32 {pr(tmp+2*i)}, {pr(tmp+2*i)}, 1.0 op_sel_hi:[1,0]")
    for i in range(2 * n): k(f"v_rcp_f32 v{tmp+i}, v{tmp+i}")
    for i, r in enumerate(regs): k(f"v_pk_mul_f32 {pr(r)}, {pr(r)}, {pr(tmp+2*i)}")

def stats_finish(k, S, out, inv_n=1.0 / 512):
    k(f"""
    v_mul_f32 v{S}, {hx(inv_n)}, v{S}
    v_mul_f32 v{S+1}, {hx(inv_n)}, v{S+1}
    v_fma_f32 v{S+1}, -v{S}, v{S}, v{S+1}
    v_max_f32 v{S+1}, 0, v{S+1}
    v_add_f32 v{S+1}, {hx(1e-5)}, v{S+1}
    v_rsq_f32 v{out}, v{S+1}
    v_mul_f32 v{out+1}, -v{S}, v{out}
    """.replace(f"v_mul_f32 v{out+1}, -v{S}", f"v_mul_f32_e64 v{out+1}, -v{S}"))

def allreduce_t4(k, S):
    k(f"""
    v_permlane32_swap_b32 v{S}, v{S+1}
    v_add_f32 v{S}, v{S}, v{S+1}
    v_mov_b32 v{S+1}, v{S}
    v_permlane16_swap_b32 v{S}, v{S+1}
    v_add_f32 v{S}, v{S}, v{S+1}
    v_add_f32_dpp v{S}, v{S}, v{S} row_ror:4 row_mask:0xf bank_mask:0xf
    v_add_f32_dpp v{S}, v{S}, v{S} row_ror:8 row_mask:0xf bank_mask:0xf
    v_mov_b32 v{S+1}, v{S}
    v_permlane32_swap_b32 v{S}, v{S+1}
    """)

ONES = 0x3f803f80
def dot_stats(k, S, regs, first):
    for n, r in enumerate(regs):
        c0 = "0" if (first and n == 0) else f"v{S}"
        c1 = "0" if (first and n == 0) else f"v{S+1}"
        k(f"v_dot2_f32_bf16 v{S}, v{r}, s51, {c0}")
        k(f"v_dot2_f32_bf16 v{S+1}, v{r}, v{r}, {c1}")

W1L = 0; YX = 131072; CONSTL = 122880
K2_LDS = 163840

def g1_issue(k, sc=""):
    k(f"""
    s_lshr_b32 s3, s5, 2
    s_lshl_b32 s48, s4, 3
    s_add_u32 s48, s48, s3              ; m
    s_and_b32 s49, s5, 3                ; g
    s_lshr_b32 s3, s49, 1
    s_add_u32 s3, s3, 1
    s_sub_u32 s7, 0, s3
    s_bitcmp1_b32 s49, 0
    s_cselect_b32 s50, s3, s7           ; sh
    s_mov_b32 s51, {ONES}
    v_lshrrev_b32 v2, 2, v1
    v_mul_u32_u24 v2, 80, v2
    v_lshrrev_b32 v3, 5, v1
    s_lshl_b32 s3, s6, 1
    v_add_u32 v3, s3, v3
    v_xor_b32 v3, v3, v1
    v_and_b32 v3, 3, v3
    v_lshl_add_u32 v2, v3, 4, v2
    s_mul_i32 s20, s48, 40960
    s_mul_i32 s3, s6, 1280
    s_add_u32 s20, s20, s3
    s_lshl_b32 s3, s50, 1
    s_add_u32 s20, s20, s3
    s_add_u32 s20, s20, 8
    v_and_b32 v4, 3, v1                 ; t
    v_lshrrev_b32 v5, 2, v1             ; c
    s_lshl_b32 s21, s48, 5
    s_add_u32 s21, s21, s50
    s_lshl_b32 s3, s6, 2
    s_add_u32 s21, s21, s3
    v_add_u32 v6, s21, v4               ; ts
    v_lshlrev_b32 v7, 10, v6
    v_lshl_add_u32 v7, v5, 4, v7
    v_lshrrev_b32 v40, 4, v1
    s_and_b32 s3, s6, 2
    s_lshl_b32 s3, s3, 1
    v_or_b32 v41, s3, v40
    v_lshlrev_b32 v41, 1, v41           ; f
    v_and_b32 v42, 15, v1
    v_xor_b32 v41, v41, v42
    v_lshlrev_b32 v40, 10, v40
    v_lshl_add_u32 v40, v41, 4, v40
    s_lshl_b32 s22, s6, 12
    s_lshl_b32 s3, s49, 8
    s_add_u32 s22, s22, s3
    v_lshlrev_b32 v43, 4, v1
    s_lshl_b32 s23, s6, 10
    s_waitcnt lgkmcnt(0)
    """)
    srd(k, 8, P('ws'), Y2B_SZ, Y2B)
    srd(k, 12, P('A_q'), 0x200000)
    srd(k, 16, P('B_w1'), 0x80000)
    srd(k, 28, P('ws'), WS_END)
    for a in range(4):
        k(f"""
        s_add_u32 m0, s23, {YX + 8192 * a}
        s_add_u32 s3, s20, {10240 * a}
        buffer_load_dwordx4 v2, s[8:11], s3 offen lds
        """)
    k(f"""
    s_add_u32 m0, s23, {CONSTL}
    s_add_u32 s3, s23, {MODC}
    buffer_load_dwordx4 v43, s[28:31], s3 offen lds
    """)
    for i4 in range(4):
        k(f"buffer_load_dwordx4 {q4(8+4*i4)}, v7, s[12:15], 0 offen offset:{256*i4}")
    for a in range(15):
        k(f"""
        s_add_u32 m0, s23, {W1L + 8192 * a}
        s_add_u32 s3, s22, {32768 * a}
        buffer_load_dwordx4 v40, s[16:19], s3 offen lds
        """)

def g1_main(k, nafter=0):
    k(f"""
    v_lshrrev_b32 v44, 4, v1            ; gq
    v_bfe_u32 v45, v1, 2, 2             ; r
    v_and_b32 v46, 3, v1                ; q'
    v_lshlrev_b32 v47, 5, v44
    v_lshl_add_u32 v47, v46, 3, v47
    v_add_u32 v47, v47, v45
    v_lshlrev_b32 v47, 6, v47
    s_lshr_b32 s3, s6, 1
    v_xor_b32 v48, s3, v46
    v_lshl_add_u32 v47, v48, 4, v47
    s_and_b32 s3, s6, 1
    s_lshl_b32 s3, s3, 3
    s_add_u32 s3, s3, {YX}
    v_add_u32 v47, s3, v47
    v_lshlrev_b32 v48, 5, v5
    v_add_u32 v48, {CONSTL}, v48
    v_lshrrev_b32 v49, 4, v6
    v_lshlrev_b32 v49, 14, v49
    v_lshrrev_b32 v50, 2, v5
    v_lshl_add_u32 v49, v50, 10, v49
    v_and_b32 v50, 1, v5
    v_lshl_add_u32 v49, v50, 9, v49
    v_and_b32 v50, 15, v6
    v_lshl_add_u32 v49, v50, 4, v49
    v_bfe_u32 v50, v5, 1, 1
    v_lshl_add_u32 v49, v50, 3, v49
    s_lshl_b32 s3, s48, 5
    s_lshl_b32 s7, s49, 3
    s_add_u32 s3, s3, s7
    v_subrev_u32 v50, s3, v6
    v_cmp_lt_u32 vcc, 7, v50
    v_mov_b32 v50, 0x80000000
    v_cndmask_b32 v49, v49, v50, vcc
    s_sub_u32 s24, s21, s3
    s_add_u32 s24, s24, 3
    v_lshrrev_b32 v50, 2, v5
    v_lshlrev_b32 v50, 10, v50
    v_and_b32 v51, 3, v5
    v_lshl_add_u32 v50, v51, 8, v50
    v_lshl_add_u32 v50, v4, 4, v50
    s_lshr_b32 s25, s6, 2               ; kh
    s_lshl_b32 s3, s25, 14
    s_and_b32 s26, s6, 3                ; np
    s_lshl_b32 s7, s26, 6
    s_add_u32 s3, s3, s7
    s_add_u32 s3, s3, {YX}
    v_add_u32 v50, s3, v50
    s_waitcnt vmcnt({15 + nafter})
    s_barrier
    """)
    for i4 in range(4):
        for h in range(2):
            k(f"ds_read_b64_tr_b16 {pr(24+4*i4+2*h)}, v47 offset:{8192*i4 + 256*h}")
    def cload(v):
        for i4 in range(4):
            for hf in range(2):
                k(f"ds_read_b128 {q4(64+32*v+8*i4+4*hf)}, v48 offset:{2048*v + 512*i4 + 16*hf}")
    dot_stats(k, 40, range(8, 16), True)
    cload(0)
    dot_stats(k, 40, range(16, 24), False)
    k("s_waitcnt lgkmcnt(4)")
    cload(1)
    allreduce_t4(k, 40)
    stats_finish(k, 40, 42)
    k("s_waitcnt lgkmcnt(0)")
    cload(2)
    bc = "op_sel:[0,0,1] op_sel_hi:[1,0,1]"
    for p in range(16):
        x = 192 + 2 * p; t = 52 + 4 * (p & 1)
        unpack(k, x, x + 1, 8 + p)
        unpack(k, t, t + 1, 24 + p)
        k(f"""
        v_pk_fma_f32 {pr(t+2)}, {pr(x)}, v[42:43], v[42:43] {bc}
        v_pk_fma_f32 {pr(t+2)}, {pr(t+2)}, {pr(64+2*p)}, {pr(96+2*p)}
        v_pk_fma_f32 {pr(x)}, {pr(t+2)}, {pr(t)}, {pr(x)}
        v_cvt_pk_bf16_f32 v{8+p}, v{x}, v{x+1}
        """)
        if p == 7:
            k("s_waitcnt lgkmcnt(4)")
            cload(3)
    dot_stats(k, 40, range(8, 24), True)
    def store_frag(base_reg, wsoff):
        L = k.label("nost")
        k(f"s_cmp_ge_u32 s24, 11\ns_cbranch_scc1 {L}")
        for i4 in range(4):
            k(f"s_mov_b32 s3, {wsoff + 4096 * i4}")
            for a in range(2):
                k(f"buffer_store_dwordx2 {pr(base_reg+4*i4+2*a)}, v49, s[28:31], s3 offen offset:{256*a}")
        k(f"{L}:")
    store_frag(8, X1)
    allreduce_t4(k, 40)
    stats_finish(k, 40, 42)
    k("s_waitcnt lgkmcnt(0)")
    for p in range(16):
        x = 192 + 2 * p
        k(f"""
        v_pk_fma_f32 {pr(x)}, {pr(x)}, v[42:43], v[42:43] {bc}
        v_pk_fma_f32 {pr(x)}, {pr(x)}, {pr(128+2*p)}, {pr(160+2*p)}
        v_cvt_pk_bf16_f32 v{24+p}, v{x}, v{x+1}
        """)
    dot_stats(k, 40, range(24, 40), True)
    store_frag(24, HB)
    allreduce_t4(k, 40)
    stats_finish(k, 40, 42)
    k("s_barrier")
    k(f"""
    s_add_u32 m0, s23, {W1L + 8192 * 15}
    s_add_u32 s3, s22, {32768 * 15}
    buffer_load_dwordx4 v224, s[16:19], s3 offen lds
    """)
    for p in range(16):
        x = 192 + 2 * p
        k(f"""
        v_pk_fma_f32 {pr(x)}, {pr(x)}, v[42:43], v[42:43] {bc}
        v_cvt_pk_bf16_f32 v{64+p}, v{x}, v{x+1}
        """)
        if p % 4 == 3:
            k(f"ds_write_b128 v50, {q4(64+p-3)} offset:{4096*(p//4)}")
    k(f"""
    s_lshl_b32 s3, s25, 14
    s_lshl_b32 s7, s25, 13
    s_add_u32 s3, s3, s7
    s_add_u32 s3, s3, {YX}
    v_lshl_add_u32 v52, v1, 4, s3       ; X mu=0
    s_xor_b32 s3, s3, 16384
    v_lshl_add_u32 v53, v1, 4, s3       ; X mu=1
    v_lshl_add_u32 v54, v44, 3, v45
    v_lshlrev_b32 v54, 8, v54           ; (8 gq + r)*256
    v_and_b32 v55, 1, v44
    v_lshl_add_u32 v55, v55, 2, v45
    v_lshlrev_b32 v55, 1, v55           ; f
    s_lshl_b32 s3, s26, 2
    v_xor_b32 v55, s3, v55
    v_lshrrev_b32 v56, 1, v46
    v_add_u32 v55, v55, v56
    v_lshl_add_u32 v54, v55, 4, v54
    v_and_b32 v56, 1, v46
    v_lshl_add_u32 v54, v56, 3, v54
    s_lshl_b32 s3, s25, 16
    v_add_u32 v54, s3, v54              ; W h=0
    v_xor_b32 v55, 32, v54              ; W h=1
    s_waitcnt vmcnt(1) lgkmcnt(0)
    s_barrier
    """)
    def rd(ks):
        b = 80 + 16 * (ks % 4)
        if ks == 7: k("s_waitcnt vmcnt(0)\ns_barrier")
        for h in range(2):
            for jh in range(2):
                k(f"ds_read_b64_tr_b16 {pr(b+4*h+2*jh)}, v{54+h} offset:{8192*ks + 1024*jh}")
        for mu in range(2):
            k(f"ds_read_b128 {q4(b+8+4*mu)}, v{52+mu} offset:{1024*ks}")
    rd(0); rd(1)
    for ks in range(8):
        b = 80 + 16 * (ks % 4)
        k(f"s_waitcnt lgkmcnt({6 if ks < 7 else 0})")
        if ks + 2 < 8: rd(ks + 2) if False else None
        for h in range(2):
            for mu in range(2):
                a = 192 + 8 * h + 4 * mu
                c = q4(a) if ks else "0"
                k(f"v_mfma_f32_16x16x32_bf16 {q4(a)}, {q4(b+4*h)}, {q4(b+8+4*mu)}, {c}")
        if ks + 2 < 8: rd(ks + 2)
    k(f"""
    s_lshl_b32 s3, s6, 11
    s_add_u32 s3, s3, {YX}
    v_lshl_add_u32 v52, v1, 4, s3
    s_xor_b32 s3, s3, 8192
    v_lshl_add_u32 v53, v1, 4, s3
    v_mov_b32 v56, {hx(GC1)}
    s_barrier
    """)

def g1_epi(k):
    gelu_consts(k)
    k(f"""
    ds_write_b128 v52, v[196:199]
    ds_write_b128 v52, v[204:207] offset:1024
    v_and_b32 v54, 15, v1
    s_lshl_b32 s3, s48, 5
    s_lshl_b32 s7, s25, 4
    s_add_u32 s3, s3, s7
    s_add_u32 s3, s3, s50
    v_add_u32 v54, s3, v54
    v_cmp_gt_u32 vcc, 2048, v54
    s_lshl_b32 s3, s48, 1
    s_add_u32 s3, s3, s25
    s_lshl_b32 s3, s3, 4
    s_lshl_b32 s7, s49, 2
    s_add_u32 s3, s3, s7
    s_add_u32 s3, s3, s26
    s_lshl_b32 s3, s3, 10
    s_add_u32 s3, s3, {HS}
    v_lshlrev_b32 v55, 4, v1
    s_waitcnt lgkmcnt(0)
    s_barrier
    ds_read_b128 v[196:199], v53
    ds_read_b128 v[204:207], v53 offset:1024
    s_waitcnt lgkmcnt(0)
    v_pk_add_f32 v[192:193], v[192:193], v[196:197]
    v_pk_add_f32 v[194:195], v[194:195], v[198:199]
    v_pk_add_f32 v[200:201], v[200:201], v[204:205]
    v_pk_add_f32 v[202:203], v[202:203], v[206:207]
    """)
    gelu_pairs(k, [192, 194, 200, 202], 208, 56)
    k(f"""
    v_cvt_pk_bf16_f32 v196, v192, v193
    v_cvt_pk_bf16_f32 v197, v194, v195
    v_cvt_pk_bf16_f32 v198, v200, v201
    v_cvt_pk_bf16_f32 v199, v202, v203
    v_cndmask_b32 v196, 0, v196, vcc
    v_cndmask_b32 v197, 0, v197, vcc
    v_cndmask_b32 v198, 0, v198, vcc
    v_cndmask_b32 v199, 0, v199, vcc
    buffer_store_dwordx4 v[196:199], v55, s[28:31], s3 offen
    """)

def w64_dma_lane(k, dst, rowbytes, t1, t2):
    k(f"""
    v_lshrrev_b32 v{t1}, 3, v1
    v_mul_u32_u24 v{dst}, {rowbytes}, v{t1}
    v_lshrrev_b32 v{t1}, 4, v1
    v_lshlrev_b32 v{t1}, 1, v{t1}
    v_xor_b32 v{t1}, v{t1}, v1
    v_and_b32 v{t1}, 7, v{t1}
    v_lshl_add_u32 v{dst}, v{t1}, 4, v{dst}
    """)

def w64_tr_lane(k, dst, t1, t2):
    k(f"""
    v_lshrrev_b32 v{t1}, 2, v1          ; 4 gq + r
    v_lshlrev_b32 v{dst}, 7, v{t1}
    v_and_b32 v{t1}, 6, v{t1}           ; f = 2*((k>>1)&3)
    v_bfe_u32 v{t2}, v1, 1, 1
    v_add_u32 v{t1}, v{t1}, v{t2}
    v_lshl_add_u32 v{dst}, v{t1}, 4, v{dst}
    v_and_b32 v{t2}, 1, v1
    v_lshl_add_u32 v{dst}, v{t2}, 3, v{dst}
    """)

def gemm64(k, nks, waddr, xreg, acc, ring, hooks=None, D=6, F=8, zero=True, post=None):
    hooks = hooks or {}; post = post or {}
    n = 4 * nks
    def rd(phi):
        if phi in hooks: hooks[phi]()
        ks, eta = divmod(phi, 4)
        v, off = waddr(ks, eta)
        b = ring + 4 * (phi % F)
        k(f"ds_read_b64_tr_b16 {pr(b)}, v{v} offset:{off}")
        k(f"ds_read_b64_tr_b16 {pr(b+2)}, v{v} offset:{off + 2048}")
    for phi in range(min(D, n)): rd(phi)
    for phi in range(n):
        ks, eta = divmod(phi, 4)
        outstanding = min(D, n - phi)
        k(f"s_waitcnt lgkmcnt({2 * (outstanding - 1)})")
        b = ring + 4 * (phi % F)
        c = q4(acc[eta]) if (ks or not zero) else "0"
        k(f"v_mfma_f32_16x16x32_bf16 {q4(acc[eta])}, {q4(b)}, {q4(xreg(ks))}, {c}")
        if phi + D < n: rd(phi + D)
        if phi in post: post[phi]()

def g24_ids(k):
    k(f"""
    s_lshr_b32 s3, s5, 3
    s_lshl_b32 s48, s4, 2
    s_add_u32 s48, s48, s3
    s_and_b32 s49, s5, 7                ; nt
    s_lshr_b32 s25, s6, 2               ; kh
    s_and_b32 s26, s6, 3                ; mt4
    s_lshl_b32 s27, s48, 2
    s_add_u32 s27, s27, s26
    s_lshl_b32 s23, s6, 10
    s_mov_b32 s51, {ONES}
    """)

def g2_pre(k, W2L):
    g24_ids(k)
    srd(k, 16, P('B_w2'), 0x80000)
    w64_dma_lane(k, 2, 1024, 3, 4)
    k(f"""
    s_lshl_b32 s22, s6, 13
    s_lshl_b32 s3, s49, 7
    s_add_u32 s22, s22, s3
    """)
    for a in range(8):
        k(f"""
        s_add_u32 m0, s23, {W2L + 8192 * a}
        s_add_u32 s3, s22, {65536 * a}
        buffer_load_dwordx4 v2, s[16:19], s3 offen lds
        """)

def exch_addrs(k, EX, a, b):
    k(f"""
    s_lshl_b32 s3, s6, 11
    s_add_u32 s3, s3, {EX}
    v_lshl_add_u32 v{a}, v1, 4, s3
    s_lshl_b32 s3, s6, 11
    s_xor_b32 s3, s3, 8192
    s_add_u32 s3, s3, {EX}
    v_lshl_add_u32 v{b}, v1, 4, s3
    """)

def eta_addrs(k, base, dst, lbase_s):
    k(f"s_lshl_b32 s3, s25, 6")
    for eta in range(4):
        k(f"s_xor_b32 s7, s3, {32 * eta}\nv_xor_b32 v{dst+eta}, s7, v{base}\nv_add_u32 v{dst+eta}, {lbase_s}, v{dst+eta}")

def g2_main(k, W2L, EX, sc=""):
    k(f"""
    v_lshlrev_b32 v2, 4, v1
    s_lshl_b32 s3, s27, 4
    s_lshl_b32 s7, s25, 3
    s_add_u32 s3, s3, s7
    s_lshl_b32 s3, s3, 10
    s_add_u32 s20, s3, {HS}
    s_add_u32 s21, s20, 4096
    """)
    for a in range(8):
        k(f"buffer_load_dwordx4 {q4(8+4*a)}, v2, s[28:31], s{20 + a // 4} offen offset:{1024*(a%4)} {sc}")
    k(f"""
    s_lshl_b32 s3, s27, 4
    s_lshl_b32 s7, s49, 1
    s_add_u32 s3, s3, s7
    s_add_u32 s3, s3, s25
    s_lshl_b32 s24, s3, 10
    s_add_u32 s3, s24, {HB}
    buffer_load_dwordx4 v[40:43], v2, s[28:31], s3 offen {sc}
    """)
    w64_tr_lane(k, 3, 4, 5)
    k(f"s_lshl_b32 s22, s25, 15\ns_add_u32 s22, s22, {W2L}")
    eta_addrs(k, 3, 44, "s22")
    exch_addrs(k, EX, 48, 49)
    k("s_waitcnt vmcnt(9)\ns_barrier")
    hooks = {}
    post = {}
    def xwait(n):
        return lambda: k(f"s_waitcnt vmcnt({n})")
    k_first = True
    for ks in range(1, 8): post[4 * ks - 1] = xwait(8 - ks)
    hooks[5] = xwait(8)
    gemm64(k, 8, lambda ks, eta: (44 + eta, 4096 * ks), lambda ks: 8 + 4 * ks, [64, 68, 72, 76], 80, hooks=hooks, post=post)

def g2_epi(k):
    k(f"""
    ds_write_b128 v48, v[72:75]
    ds_write_b128 v48, v[76:79] offset:1024
    v_and_b32 v4, 15, v1
    v_lshlrev_b32 v4, 7, v4
    v_lshrrev_b32 v5, 5, v1
    v_lshl_add_u32 v4, v5, 2, v4
    v_and_b32 v5, 16, v1
    v_lshl_add_u32 v4, v5, 26, v4
    s_lshl_b32 s3, s27, 11
    s_lshl_b32 s7, s49, 4
    s_add_u32 s3, s3, s7
    s_lshl_b32 s7, s25, 3
    s_add_u32 s3, s3, s7
    s_add_u32 s20, s3, {STAT}
    s_add_u32 s21, s24, {X1P}
    s_waitcnt vmcnt(0) lgkmcnt(0)
    s_barrier
    ds_read_b128 v[72:75], v49
    ds_read_b128 v[76:79], v49 offset:1024
    """)
    for e in range(4): unpack(k, 80 + 2 * e, 81 + 2 * e, 40 + e)
    for e in range(4): k(f"v_pk_add_f32 {pr(64+2*e)}, {pr(64+2*e)}, {pr(80+2*e)}")
    k("s_waitcnt lgkmcnt(0)")
    for e in range(4): k(f"v_pk_add_f32 {pr(64+2*e)}, {pr(64+2*e)}, {pr(72+2*e)}")
    for e in range(4): k(f"v_cvt_pk_bf16_f32 v{40+e}, v{64+2*e}, v{65+2*e}")
    k("buffer_store_dwordx4 v[40:43], v2, s[28:31], s21 offen")
    dot_stats(k, 50, range(40, 44), True)
    k(f"""
    v_permlane32_swap_b32 v50, v51
    v_add_f32 v50, v50, v51
    v_mov_b32 v51, v50
    v_permlane16_swap_b32 v50, v51
    v_add_f32 v50, v50, v51
    buffer_store_dword v50, v4, s[28:31], s20 offen
    """)

W3L = 0; CSL = 131072
def g3_ids(k):
    k(f"""
    s_lshr_b32 s3, s5, 4
    s_lshl_b32 s56, s4, 1
    s_add_u32 s56, s56, s3              ; M3
    s_and_b32 s57, s5, 15               ; nt3
    s_lshl_b32 s58, s56, 3
    s_add_u32 s58, s58, s6
    s_lshl_b32 s23, s6, 10
    """)

def g3_dma(k, lane, alist):
    for nh, a in alist:
        k(f"""
        s_add_u32 m0, s23, {W3L + 65536 * nh + 8192 * a}
        s_add_u32 s3, s59, {128 * nh + 8 * 28672 * a}
        buffer_load_dwordx4 v{lane}, s[60:63], s3 offen lds
        """)

def g3_setup(k, lane, t1, t2):
    g3_ids(k)
    srd(k, 60, P('B_w3'), 512 * 3584)
    w64_dma_lane(k, lane, 3584, t1, t2)
    k(f"""
    s_mul_i32 s59, s6, 28672
    s_lshl_b32 s3, s57, 8
    s_add_u32 s59, s59, s3
    """)

def g3_colsum(k):
    w64_tr_lane(k, 3, 4, 5)
    k(f"""
    s_and_b32 s3, s6, 3
    s_lshl_b32 s3, s3, 5
    v_xor_b32 v4, s3, v3
    s_lshr_b32 s3, s6, 2
    s_lshl_b32 s3, s3, 16
    s_add_u32 s3, s3, {W3L}
    v_add_u32 v4, s3, v4
    v_mov_b32 v72, {ONES}
    v_mov_b32 v73, {ONES}
    v_mov_b32 v74, {ONES}
    v_mov_b32 v75, {ONES}
    """)
    for half in range(2):
        for x in range(7 if False else 8):
            ks = 8 * half + x
            if x == 7: k("s_waitcnt lgkmcnt(8)")
            k(f"ds_read_b64_tr_b16 {pr(80+4*x)}, v4 offset:{4096*ks}")
            k(f"ds_read_b64_tr_b16 {pr(82+4*x)}, v4 offset:{4096*ks + 2048}")
        k("s_waitcnt lgkmcnt(0)")
        for x in range(8):
            c = "v[76:79]" if (half or x) else "0"
            k(f"v_mfma_f32_16x16x32_bf16 v[76:79], {q4(80+4*x)}, v[72:75], {c}")
    k(f"""
    v_lshrrev_b32 v5, 4, v1
    v_lshlrev_b32 v5, 4, v5
    s_lshl_b32 s3, s6, 6
    s_add_u32 s3, s3, {CSL}
    v_add_u32 v6, s3, v5
    v_add_u32 v5, {CSL}, v5
    ds_write_b128 v6, v[76:79]
    """)
    for h4 in range(4):
        k(f"v_xor_b32 v{4+4+h4}, {32*h4}, v3\nv_add_u32 v{12+h4}, 65536, v{8+h4}" if W3L == 0 else "ERR")

def g3_main(k, sc="", mid=None):
    gelu_consts(k)
    k(f"""
    v_lshlrev_b32 v2, 4, v1
    s_lshl_b32 s3, s58, 14
    s_add_u32 s20, s3, {X1P}
    """)
    for a in range(16):
        if a % 4 == 0 and a: k("s_add_u32 s20, s20, 4096")
        k(f"buffer_load_dwordx4 {q4(128+4*a)}, v2, s[28:31], s20 offen offset:{1024*(a%4)} {sc}")
    k(f"""
    v_and_b32 v6, 15, v1
    v_lshlrev_b32 v6, 7, v6
    v_lshrrev_b32 v7, 4, v1
    v_lshl_add_u32 v6, v7, 5, v6
    s_lshl_b32 s3, s58, 11
    s_add_u32 s3, s3, {STAT}
    buffer_load_dwordx4 v[16:19], v6, s[28:31], s3 offen {sc}
    buffer_load_dwordx4 v[20:23], v6, s[28:31], s3 offen offset:16 {sc}
    v_mov_b32 v26, {hx(GC1)}
    s_mul_i32 s21, s58, 56
    s_lshl_b32 s3, s57, 2
    s_add_u32 s21, s21, s3
    s_lshl_b32 s21, s21, 10
    s_add_u32 s21, s21, {H3}
    s_waitcnt lgkmcnt(0)
    s_barrier
    """)
    for nh in range(2):
        post = {}; hooks = {}
        if nh == 0:
            for ks in range(1, 16): post[4 * ks - 1] = (lambda n: (lambda: k(f"s_waitcnt vmcnt({n})")))(17 - ks)
            hooks[5] = lambda: k("s_waitcnt vmcnt(17)")
        acc = [32 + 16 * nh + 4 * e for e in range(4)]
        gemm64(k, 16, lambda ks, eta: (8 + 4 * nh + eta, 4096 * ks), lambda ks: 128 + 4 * ks, acc, 80, hooks=hooks, post=post)
        for e in range(4):
            k(f"ds_read_b128 {q4(64+4*e)}, v5 offset:{256*nh + 64*e}")
        if mid and nh == 0: mid()
        if nh == 0:
            k(f"""
            s_waitcnt vmcnt(0)
            v_pk_add_f32 v[16:17], v[16:17], v[18:19]
            v_pk_add_f32 v[20:21], v[20:21], v[22:23]
            v_pk_add_f32 v[16:17], v[16:17], v[20:21]
            v_permlane32_swap_b32 v16, v17
            v_add_f32 v16, v16, v17
            v_mov_b32 v17, v16
            v_permlane16_swap_b32 v16, v17
            v_add_f32 v16, v16, v17
            v_mov_b32 v17, v16
            v_permlane32_swap_b32 v16, v17
            """)
            stats_finish(k, 16, 24)
        k("s_waitcnt lgkmcnt(0)")
        a0 = acc[0]
        for p in range(8):
            k(f"v_pk_mul_f32 {pr(64+2*p)}, {pr(64+2*p)}, v[24:25] op_sel:[0,1] op_sel_hi:[1,1]")
        for p in range(8):
            k(f"v_pk_fma_f32 {pr(a0+2*p)}, {pr(a0+2*p)}, v[24:25], {pr(64+2*p)} op_sel_hi:[1,0,1]")
        gelu_pairs(k, [a0 + 2 * p for p in range(8)], 64, 26)
        for p in range(8):
            k(f"v_cvt_pk_bf16_f32 v{64+p}, v{a0+2*p}, v{a0+2*p+1}")
        k(f"""
        buffer_store_dwordx4 v[64:67], v2, s[28:31], s21 offen offset:{2048*nh}
        buffer_store_dwordx4 v[68:71], v2, s[28:31], s21 offen offset:{2048*nh + 1024}
        """)

def g4_all(k, sc=""):
    g24_ids(k)
    srd(k, 16, P('B_w4'), 1792 * 1024)
    srd(k, 12, P('out'), 0x200000)
    w64_dma_lane(k, 2, 1024, 3, 4)
    k(f"""
    s_mul_i32 s22, s25, {28 * 32768}
    s_lshl_b32 s3, s26, 13
    s_add_u32 s22, s22, s3
    s_lshl_b32 s3, s49, 7
    s_add_u32 s22, s22, s3
    s_mul_i32 s23, s25, 81920
    s_lshl_b32 s3, s26, 10
    s_add_u32 s23, s23, s3
    v_lshlrev_b32 v5, 4, v1
    s_mul_i32 s20, s27, 56
    s_mul_i32 s3, s25, 28
    s_add_u32 s20, s20, s3
    s_lshl_b32 s20, s20, 10
    s_add_u32 s20, s20, {H3}
    s_lshl_b32 s3, s27, 4
    s_lshl_b32 s7, s49, 1
    s_add_u32 s3, s3, s7
    s_add_u32 s3, s3, s25
    s_lshl_b32 s24, s3, 10
    s_add_u32 s3, s24, {X1P}
    buffer_load_dwordx4 v[16:19], v5, s[28:31], s3 offen {sc}
    s_add_u32 s3, s24, {X1}
    buffer_load_dwordx4 v[20:23], v5, s[28:31], s3 offen {sc}
    v_lshrrev_b32 v6, 4, v1
    v_lshlrev_b32 v7, 4, v6
    s_lshl_b32 s3, s49, 8
    s_lshl_b32 s7, s25, 7
    s_add_u32 s3, s3, s7
    s_add_u32 s3, s3, {MODC + 8192}
    buffer_load_dwordx4 v[24:27], v7, s[28:31], s3 offen
    buffer_load_dwordx4 v[28:31], v7, s[28:31], s3 offen offset:64
    """)
    def dma(kap):
        slot = kap if kap < 20 else kap - 20
        k(f"""
        s_add_u32 m0, s23, {4096 * slot}
        s_add_u32 s3, s22, {32768 * kap}
        buffer_load_dwordx4 v2, s[16:19], s3 offen lds
        """)
    def xl(kap):
        k(f"s_add_u32 s3, s20, {4096 * (kap // 4)}")
        k(f"buffer_load_dwordx4 {q4(112+4*kap)}, v5, s[28:31], s3 offen offset:{1024*(kap%4)} {sc}")
    for kap in range(20): dma(kap); xl(kap)
    for kap in range(20, 28): xl(kap)
    w64_tr_lane(k, 3, 4, 6)
    k("s_mul_i32 s21, s25, 81920")
    eta_addrs(k, 3, 32, "s21")
    for eta in range(4): k(f"v_add_u32 v{36+eta}, 65536, v{32+eta}")
    exch_addrs(k, 0, 40, 41)
    hooks = {}
    def mk(c):
        def f():
            n = {0: 40, 1: 32, 2: 24, 3: 16, 4: 16, 5: 4, 6: 0}[c]
            k(f"s_waitcnt vmcnt({n})\ns_barrier")
            if c == 3:
                for kap in range(20, 28): dma(kap)
        return f
    for c in range(7): hooks[16 * c] = mk(c)
    def waddr(ks, eta):
        slot = ks if ks < 20 else ks - 20
        return (32 + eta, 4096 * slot) if slot < 16 else (36 + eta, 4096 * (slot - 16))
    gemm64(k, 28, waddr, lambda ks: 112 + 4 * ks, [64, 68, 72, 76], 80, hooks=hooks)
    k(f"""
    s_barrier
    ds_write_b128 v40, v[72:75]
    ds_write_b128 v40, v[76:79] offset:1024
    v_and_b32 v4, 15, v1
    v_lshlrev_b32 v4, 10, v4
    v_lshrrev_b32 v6, 4, v1
    v_lshl_add_u32 v4, v6, 3, v4
    s_lshl_b32 s3, s27, 14
    s_lshl_b32 s7, s49, 7
    s_add_u32 s3, s3, s7
    s_lshl_b32 s7, s25, 6
    s_add_u32 s3, s3, s7
    s_waitcnt lgkmcnt(0)
    s_barrier
    ds_read_b128 v[72:75], v41
    ds_read_b128 v[76:79], v41 offset:1024
    """)
    for e in range(4): unpack(k, 80 + 2 * e, 81 + 2 * e, 16 + e)
    for e in range(4): unpack(k, 88 + 2 * e, 89 + 2 * e, 20 + e)
    for e in range(4): k(f"v_pk_add_f32 {pr(64+2*e)}, {pr(64+2*e)}, {pr(80+2*e)}")
    k("s_waitcnt lgkmcnt(0)")
    for e in range(4): k(f"v_pk_add_f32 {pr(64+2*e)}, {pr(64+2*e)}, {pr(72+2*e)}")
    for e in range(4): k(f"v_pk_fma_f32 {pr(64+2*e)}, {pr(64+2*e)}, {pr(24+2*e)}, {pr(88+2*e)}")
    for e in range(4): k(f"v_cvt_pk_bf16_f32 v{80+e}, v{64+2*e}, v{65+2*e}")
    k(f"""
    buffer_store_dwordx2 v[80:81], v4, s[12:15], s3 offen
    buffer_store_dwordx2 v[82:83], v4, s[12:15], s3 offen offset:32
    """)

def kernel_G1():
    k = K("g1_kernel", vgpr=232, sgpr=100)
    entry(k)
    g1_issue(k)
    k("v_mov_b32 v224, v40")
    g1_main(k)
    g1_epi(k)
    finish(k)
    return k

def kernel_G2():
    k = K("g2_kernel", vgpr=128, sgpr=100)
    entry(k)
    k("s_waitcnt lgkmcnt(0)")
    srd(k, 28, P('ws'), WS_END)
    g2_pre(k, 0)
    g2_main(k, 0, 65536)
    g2_epi(k)
    finish(k)
    return k

def kernel_G3():
    k = K("g3_kernel", vgpr=192, sgpr=100)
    entry(k)
    k(f"""
    s_and_b32 s3, s5, 15
    s_cmp_ge_u32 s3, 14
    s_cbranch_scc1 {k.name}_end
    s_waitcnt lgkmcnt(0)
    """)
    srd(k, 28, P('ws'), WS_END)
    g3_setup(k, 2, 3, 4)
    g3_dma(k, 2, [(nh, a) for nh in range(2) for a in range(8)])
    k("s_waitcnt vmcnt(0)\ns_barrier")
    g3_colsum(k)
    g3_main(k)
    finish(k)
    return k

def kernel_G4():
    k = K("g4_kernel", vgpr=224, sgpr=100)
    entry(k)
    k("s_waitcnt lgkmcnt(0)")
    srd(k, 28, P('ws'), WS_END)
    g4_all(k)
    finish(k)
    return k

def kernel_T():
    k = K("t_kernel", vgpr=128, sgpr=100)
    entry(k)
    phase_T_issue(k)
    phase_T_compute(k, 0)
    finish(k)
    return k

def kernel_C():
    k = K("c_kernel", vgpr=168, sgpr=100)
    entry(k)
    k("s_waitcnt lgkmcnt(0)")
    srd(k, 28, P('ws'), WS_END)
    phase_C_pre(k)
    k("s_waitcnt vmcnt(0)")
    phase_C_pre2(k)
    phase_C_main(k)
    finish(k)
    return k

if __name__ == "__main__":
    ks = [kernel_T(), kernel_C(), kernel_G1(), kernel_G2(), kernel_G3(), kernel_G4()]
    ls = [("t_kernel", 256, 512, K1_LDS), ("c_kernel", 256, 512, K1_LDS)] + [(f"g{i}_kernel", 256, 512, K2_LDS) for i in (1, 2, 3, 4)]
    open(sys.argv[1] if len(sys.argv) > 1 else "k.s", "w").write(build(ls, ks))
```

```python
import sys, struct
from asmlib import *

KVT = 0x000000; KVT_SZ = 0x200000
Y2B = 0x200000; Y2B_SZ = 64 * 40960
MODP = 0x480000
MODC = 0x4E0000
QST = 0x4E4000; QST_SZ = 16384
FLAGS = 0x4F0000
HS = 0x500000
ST2 = 0x4E8000
X1 = 0x900000
X1P = 0xB00000
STAT = 0xD00000
H3 = 0xE00000
WS_END = 0x1500000
DBGWS = 0x1800000
STAMPS = False
FORCE_SLOW = False
TAILWARM = False

def P(n): return 64 + ARG[n] // 4
LOG2E = 1.4426950408889634
def f2u(x): return struct.unpack('<I', struct.pack('<f', x))[0]
def hx(x): return "0x%08x" % f2u(x)
def pr(r): return f"v[{r}:{r+1}]"
def q4(r): return f"v[{r}:{r+3}]"
ONES = 0x3f803f80
GC1 = -2.0 * LOG2E * 0.7978845608028654
GC2 = GC1 * 0.044715
OOB = 0x80000000

class KK(K):
    def __init__(self, *a, **kw):
        super().__init__(*a, **kw)
        self.vm_log = []
        self.bgq = []
        self.nstamp = 0
    def vm(self, text, tag="x", maybe=False):
        self(text)
        if not maybe: self.vm_log.append(tag)
    def wait_vm(self, *tags, extra=""):
        last = -1
        for i, t in enumerate(self.vm_log):
            if t in tags: last = i
        assert last >= 0, tags
        n = len(self.vm_log) - 1 - last
        assert n <= 63
        self(f"s_waitcnt vmcnt({n}) {extra}")
    def bg(self, items): self.bgq += items
    def tick(self, n=1):
        for _ in range(n):
            if self.bgq: self.bgq.pop(0)()
    def flush(self):
        while self.bgq: self.tick()

def srd(k, d, ptr, size, off=0):
    if off: k(f"s_add_u32 s{d}, s{ptr}, {off}\ns_addc_u32 s{d+1}, s{ptr+1}, 0")
    else: k(f"s_mov_b32 s{d}, s{ptr}\ns_mov_b32 s{d+1}, s{ptr+1}")
    k(f"s_mov_b32 s{d+2}, {size}\ns_mov_b32 s{d+3}, 0x20000")
def srd_s(k, d, ptr, size, soff):
    k(f"s_add_u32 s{d}, s{ptr}, s{soff}\ns_addc_u32 s{d+1}, s{ptr+1}, 0")
    k(f"s_mov_b32 s{d+2}, {size}\ns_mov_b32 s{d+3}, 0x20000")

def stamp(k, idx=None):
    if not STAMPS: return
    if idx is None: idx = k.nstamp
    k.nstamp = idx + 1
    k(f"""
    s_memtime s[98:99]
    s_waitcnt lgkmcnt(0)
    s_sub_u32 s98, s98, s96
    v_writelane_b32 v254, s98, {idx}
    """)
def stamp_out(k, kid):
    if not STAMPS: return
    stamp(k)
    k(f"""
    s_lshl_b32 s98, s2, 3
    s_add_u32 s98, s98, s6
    s_lshl_b32 s98, s98, 8
    s_add_u32 s98, s98, {DBGWS + kid * 0x80000}
    v_and_b32 v255, 63, v0
    v_lshlrev_b32 v255, 2, v255
    v_add_u32 v255, s98, v255
    global_store_dword v255, v254, s[{P('ws')}:{P('ws')+1}]
    """)

def entry(k):
    if STAMPS:
        k.vgpr = 256
        k("s_memtime s[96:97]\nv_mov_b32 v254, 0")
    k(f"""
    s_cmp_ge_u32 s2, 256
    s_cbranch_scc1 {k.name}_end
    s_load_dwordx16 s[64:79], s[0:1], 0
    s_load_dwordx16 s[80:95], s[0:1], 64
    v_lshrrev_b32 v1, 6, v0
    s_and_b32 s4, s2, 7
    s_lshr_b32 s5, s2, 3
    v_readfirstlane_b32 s6, v1
    v_and_b32 v1, 63, v0
    """)
def finish(k, kid=0):
    stamp_out(k, kid)
    k(f"{k.name}_end:\ns_endpgm")

def unpack(k, dlo, dhi, src):
    k(f"v_lshlrev_b32 v{dlo}, 16, v{src}\nv_and_b32 v{dhi}, 0xffff0000, v{src}")

SPIN_MAX = 2000000
def sync_init(k, VS):
    k(f"""
    v_and_b32 v{VS+1}, 31, v1
    s_lshl_b32 s3, s4, 5
    v_add_u32 v{VS+1}, s3, v{VS+1}
    s_add_u32 s3, s3, s5
    v_mov_b32 v{VS+5}, s3
    s_getreg_b32 s3, hwreg(HW_REG_XCC_ID, 0, 4)
    s_or_b32 s3, s3, 0x80
    v_mov_b32 v{VS}, s3
    s_mov_b32 s45, 0
    """)
def sync_publish(k, VS):
    k(f"""
    s_mov_b64 s[46:47], exec
    s_mov_b64 exec, 1
    buffer_store_byte v{VS}, v{VS+5}, s[40:43], 0 offen sc1
    s_mov_b64 exec, s[46:47]
    """)
def sync_table_issue(k, VS):
    k(f"buffer_load_ubyte v{VS+2}, v{VS+1}, s[40:43], 0 offen sc1")
def sync_table_check(k, VS):
    L = k.label("tbl"); D = k.label("tbld")
    k(f"""
    {L}:
    v_cmp_gt_u32 vcc, 0x80, v{VS+2}
    s_cbranch_vccz {D}
    s_add_u32 s45, s45, 1
    s_cmp_gt_u32 s45, {SPIN_MAX}
    s_cbranch_scc1 {D}
    buffer_load_ubyte v{VS+2}, v{VS+1}, s[40:43], 0 offen sc1
    s_waitcnt vmcnt(0)
    s_branch {L}
    {D}:
    v_and_b32 v{VS+2}, 0x8f, v{VS+2}
    v_cmp_ne_u32 vcc, v{VS}, v{VS+2}
    s_cmp_lg_u64 vcc, 0
    s_cselect_b32 s44, 1, 0
    """)
    if FORCE_SLOW: k("s_mov_b32 s44, 1")
def sync_signal(k, VS, s_off, bit):
    L = k.label("sgs"); D = k.label("sgd")
    k(f"""
    v_mov_b32 v{VS+3}, 1
    v_mov_b32 v{VS+4}, s{s_off}
    v_or_b32 v{VS}, {1 << bit}, v{VS}
    s_mov_b64 s[46:47], exec
    s_mov_b64 exec, 1
    s_cmp_lg_u32 s44, 0
    s_cbranch_scc1 {L}
    buffer_store_dword v{VS+3}, v{VS+4}, s[28:31], 0 offen
    s_branch {D}
    {L}:
    buffer_store_byte v{VS}, v{VS+5}, s[40:43], 0 offen sc1
    {D}:
    s_mov_b64 exec, s[46:47]
    """)
def sync_poll(k, VS, s_line, nflags, bit, s_first=None):
    L = k.label("pl"); D = k.label("pld"); E = k.label("ple"); S = k.label("pls"); S2 = k.label("plt")
    k(f"""
    v_min_u32 v{VS+4}, {nflags - 1}, v1
    s_cmp_lg_u32 s44, 0
    s_cbranch_scc1 {S}
    v_lshlrev_b32 v{VS+4}, 2, v{VS+4}
    {L}:
    buffer_load_dword v{VS+3}, v{VS+4}, s[28:31], s{s_line} offen sc1
    s_waitcnt vmcnt(0)
    v_cmp_ne_u32 vcc, 1, v{VS+3}
    s_cbranch_vccz {E}
    s_add_u32 s45, s45, 1
    s_cmp_gt_u32 s45, {SPIN_MAX}
    s_cbranch_scc0 {L}
    s_branch {E}
    {S}:
    s_lshl_b32 s3, s4, 5
    """)
    if s_first is not None: k(f"s_add_u32 s3, s3, s{s_first}")
    k(f"""
    {S2}:
    buffer_load_ubyte v{VS+3}, v{VS+4}, s[40:43], s3 offen sc1
    s_waitcnt vmcnt(0)
    v_and_b32 v{VS+3}, {1 << bit}, v{VS+3}
    v_cmp_eq_u32 vcc, 0, v{VS+3}
    s_cbranch_vccz {D}
    s_add_u32 s45, s45, 1
    s_cmp_gt_u32 s45, {SPIN_MAX}
    s_cbranch_scc0 {S2}
    {D}:
    {E}:
    """)
def only_wave(k, w, fn):
    L = k.label("ow")
    k(f"s_cmp_lg_u32 s6, {w}\ns_cbranch_scc1 {L}")
    fn()
    k(f"{L}:")

def stats_finish(k, S, out, inv_n=1.0 / 512):
    k(f"""
    v_mul_f32 v{S}, {hx(inv_n)}, v{S}
    v_mul_f32 v{S+1}, {hx(inv_n)}, v{S+1}
    v_fma_f32 v{S+1}, -v{S}, v{S}, v{S+1}
    v_max_f32 v{S+1}, 0, v{S+1}
    v_add_f32 v{S+1}, {hx(1e-5)}, v{S+1}
    v_rsq_f32 v{out}, v{S+1}
    v_mul_f32_e64 v{out+1}, -v{S}, v{out}
    """)
def allreduce(k, S, rots):
    k(f"""
    v_permlane32_swap_b32 v{S}, v{S+1}
    v_add_f32 v{S}, v{S}, v{S+1}
    v_mov_b32 v{S+1}, v{S}
    v_permlane16_swap_b32 v{S}, v{S+1}
    v_add_f32 v{S}, v{S}, v{S+1}
    """)
    for r in rots: k(f"v_add_f32_dpp v{S}, v{S}, v{S} row_ror:{r} row_mask:0xf bank_mask:0xf")
    k(f"v_mov_b32 v{S+1}, v{S}\nv_permlane32_swap_b32 v{S}, v{S+1}")
def dot_stats(k, S, regs, first, tick=0):
    for n, r in enumerate(regs):
        c0 = "0" if (first and n == 0) else f"v{S}"
        c1 = "0" if (first and n == 0) else f"v{S+1}"
        k(f"v_dot2_f32_bf16 v{S}, v{r}, s51, {c0}")
        k(f"v_dot2_f32_bf16 v{S+1}, v{r}, v{r}, {c1}")
        if tick and n % tick == tick - 1: k.tick()

TT = 0
MP = 9216
UR = 25600; UR_CH = 4608
KC = 34816; KC_CS = 4160; KC_CH = 8 * 4160
KT = KC + 2 * KC_CH
VT = KT + 9216
K1_LDS = VT + 8192
RED1 = TT

def conv_body(k, tg, dh):
    tiles = [[0, 3, 4, 7], [1, 2, 5, 6]][tg]
    tmax = tiles[-1]
    def Areg(s, ip): return 32 + 64 * s + 4 * ip
    def Breg(s, e): return 64 + 64 * s + 4 * e
    def order():
        mf = [(ip, ti, t) for ip in range(tmax + 1) for ti, t in enumerate(tiles) if ip <= t]
        seen = [];
        for ip, ti, t in mf:
            for x in (('A', ip), ('B', t - ip)):
                if x not in seen: seen.append(x)
        return mf, seen
    mf, seen = order()
    def loads(s, dl):
        d = 4 * dh + dl
        L = []
        for kind, x in seen:
            if kind == 'A': L.append(f"ds_read_b128 {q4(Areg(s, x))}, v2 offset:{64*d + 512*x}")
            else: L.append(f"ds_read_b128 {q4(Breg(s, x))}, v3 offset:{64*d + 512*(7-x)}")
        return L
    nl = len(seen)
    first = loads(0, 0)
    for l in first[:15]: k(l)
    pending_first = first[15:]
    for dl in range(4):
        s = dl & 1
        nxt = pending_first + (loads(1 - s, dl + 1) if dl < 3 else [])
        npf = len(pending_first)
        issued_cur = nl - npf
        pending_first = []
        ni = 0
        for n, (ip, ti, t) in enumerate(mf):
            needi = max(seen.index(('A', ip)), seen.index(('B', t - ip)))
            tot_issued = issued_cur + ni
            assert needi < tot_issued
            allow = tot_issued - 1 - needi
            k(f"s_waitcnt lgkmcnt({min(allow, 15)})")
            c = q4(8 + 4 * ti) if (dl or ip) else "0"
            k(f"v_mfma_f32_16x16x32_bf16 {q4(8+4*ti)}, {q4(Areg(s, ip))}, {q4(Breg(s, t - ip))}, {c}")
            if ni < len(nxt) and allow < 15:
                k(nxt[ni]); ni += 1
        while ni < len(nxt):
            k("s_waitcnt lgkmcnt(14)"); k(nxt[ni]); ni += 1
    stamp(k, 8)
    keep = [2 * dh, 2 * dh + 1]; send = [2 * (1 - dh), 2 * (1 - dh) + 1]
    for n, ti in enumerate(keep):
        k(f"ds_read_b64 {pr(32+2*n)}, v6 offset:{512*(7-tiles[ti])}")
    k(f"""
    ds_write_b128 v4, {q4(8+4*send[0])} offset:{RED1}
    ds_write_b128 v4, {q4(8+4*send[1])} offset:{RED1 + 1024}
    s_waitcnt lgkmcnt(0)
    s_barrier
    ds_read_b128 v[40:43], v5 offset:{RED1}
    ds_read_b128 v[44:47], v5 offset:{RED1 + 1024}
    """)
    for n, ti in enumerate(keep):
        a = 8 + 4 * ti; b = 48 + 4 * n
        unpack(k, b + 3, b + 2, 32 + 2 * n)
        unpack(k, b + 1, b + 0, 33 + 2 * n)
        k(f"v_pk_fma_f32 {pr(a)}, {pr(b)}, {pr(24)}, {pr(a)} op_sel_hi:[1,0,1]")
        k(f"v_pk_fma_f32 {pr(a+2)}, {pr(b+2)}, {pr(24)}, {pr(a+2)} op_sel_hi:[1,0,1]")
        k(f"v_add_u32 v{60+2*n}, {tiles[ti] * 8 * 40960}, v26")
        k(f"v_add_u32 v{61+2*n}, {tiles[ti] * 8 * 40960}, v27")
    k("s_waitcnt lgkmcnt(0)")
    for n, ti in enumerate(keep):
        a = 8 + 4 * ti
        k(f"""
        v_pk_add_f32 {pr(a)}, {pr(a)}, {pr(40+4*n)}
        v_pk_add_f32 {pr(a+2)}, {pr(a+2)}, {pr(42+4*n)}
        v_cvt_pk_bf16_f32 v{56+2*n}, v{a}, v{a+1}
        v_cvt_pk_bf16_f32 v{57+2*n}, v{a+2}, v{a+3}
        buffer_store_dwordx2 {pr(56+2*n)}, v{60+2*n}, s[12:15], 0 offen
        buffer_store_dwordx2 {pr(56+2*n)}, v{61+2*n}, s[12:15], 0 offen
        """)

def kernel_1():
    k = KK("k1_kernel", vgpr=176, sgpr=100)
    VS = 168
    entry(k)
    k(f"""
    v_lshrrev_b32 v2, 3, v1
    v_lshlrev_b32 v2, 10, v2
    v_and_b32 v3, 7, v1
    v_lshl_add_u32 v2, v3, 4, v2         ; (l>>3)*1024 + 16 (l&7)
    s_lshl_b32 s3, s5, 16                ; 64 i * 1024
    s_lshl_b32 s7, s4, 7                 ; 128 j
    s_add_u32 s20, s3, s7
    v_add_u32 v7, s7, v2
    v_add_u32 v8, s20, v2
    v_add_u32 v8, 0xffffe000, v8
    s_mov_b32 s50, s20
    s_lshl_b32 s3, s6, 13
    s_add_u32 s20, s20, s3
    s_lshl_b32 s23, s6, 10
    v_and_b32 v4, 31, v0                 ; cp
    v_lshrrev_b32 v5, 5, v0              ; rg
    s_lshl_b32 s3, s4, 9
    v_lshl_add_u32 v6, v4, 4, s3
    s_lshl_b32 s3, s5, 4
    s_lshl_b32 s21, s6, 1
    s_add_u32 s3, s3, s21                ; row = 16 i + 2 w
    s_mul_i32 s21, s3, 6144
    s_add_u32 s22, s21, 6144
    s_lshl_b32 s24, s3, 1
    s_lshl_b32 s3, s4, 6
    s_lshl_b32 s7, s5, 1
    s_add_u32 s36, s3, s7                ; d0
    v_lshlrev_b32 v9, 4, v1              ; lane*16
    s_mov_b32 s51, {ONES}
    s_lshl_b32 s26, s4, 7
    s_add_u32 s26, s26, {FLAGS}          ; line
    s_lshl_b32 s3, s5, 2
    s_add_u32 s27, s26, s3
    v_lshrrev_b32 v37, 3, v0
    v_and_b32 v38, 7, v0
    v_mul_u32_u24 v39, 144, v37
    v_lshl_add_u32 v39, v38, 4, v39
    v_lshlrev_b32 v37, 12, v37
    v_lshl_add_u32 v37, v38, 4, v37
    s_lshl_b32 s48, s4, 18
    s_lshl_b32 s7, s5, 7
    s_sub_u32 s48, s48, s7
    s_add_u32 s48, s48, {KVT + 3968}
    """)
    sync_init(k, VS)
    k(f"""
    v_mov_b32 v{VS+3}, 0
    v_mov_b32 v{VS+4}, s27
    s_waitcnt lgkmcnt(0)
    """)
    srd(k, 28, P('ws'), WS_END)
    LS0 = k.label("s0"); LSJ = k.label("sj")
    k(f"s_cmp_eq_u32 s6, 0\ns_cbranch_scc1 {LS0}")
    srd(k, 8, P('A_k'), 0x200000)
    srd(k, 12, P('A_v'), 0x200000)
    k(f"s_add_u32 m0, s23, {KT + 1024}")
    k("buffer_load_dwordx4 v2, s[8:11], s20 offen lds")
    k(f"s_add_u32 m0, s23, {VT}")
    k("buffer_load_dwordx4 v2, s[12:15], s20 offen lds")
    only_wave(k, 1, lambda: k(f"s_mov_b32 m0, {KT}\nbuffer_load_dwordx4 v8, s[8:11], 0 offen lds"))
    only_wave(k, 2, lambda: k(f"s_mov_b32 m0, {KT + 1024}\nbuffer_load_dwordx4 v2, s[8:11], s50 offen lds"))
    only_wave(k, 3, lambda: k(f"s_mov_b32 m0, {VT}\nbuffer_load_dwordx4 v2, s[12:15], s50 offen lds"))
    k(f"s_branch {LSJ}\n{LS0}:")
    k(f"""
    s_mov_b64 s[46:47], exec
    s_mov_b64 exec, 1
    buffer_store_dword v{VS+3}, v{VS+4}, s[28:31], 0 offen
    s_mov_b64 exec, s[46:47]
    """)
    srd(k, 40, P('dbg'), 256)
    k("s_waitcnt vmcnt(0)")
    sync_publish(k, VS)
    k(f"{LSJ}:")
    srd(k, 40, P('dbg'), 256)
    srd(k, 16, P('A_shift_k'), 4096)
    k.vm("buffer_load_dwordx4 v[24:27], v6, s[16:19], 0 offen", "shk")
    k(f"""
    s_load_dword s25, s[{P('c')}:{P('c')+1}], s24
    s_lshl_b32 s3, s36, 1
    s_load_dword s37, s[{P('A_ssm_D')}:{P('A_ssm_D')+1}], s3
    """)
    srd(k, 16, P('w_mod'), 512 * 6144)
    k(f"""
    v_cmp_lt_u32 vcc, 47, v1
    v_mov_b32 v8, {OOB}
    v_cndmask_b32 v7, v7, v8, vcc
    s_lshl_b32 s49, s4, 5
    s_add_u32 s49, s49, s5
    s_lshl_b32 s39, s49, 3
    s_add_u32 s39, s39, s6               ; q token = 256 j + 8 i + w
    s_mul_i32 s49, s49, 1536
    s_add_u32 s49, s49, {MODP}
    v_lshlrev_b32 v44, 2, v0
    s_lshl_b32 s3, s36, 12
    """)
    srd_s(k, 32, P('A_ssm_k'), 8192, 3)
    k(f"""
    s_lshr_b32 s38, s6, 2                ; c2
    s_mul_i32 s3, s38, {KC_CH - 4096}
    s_add_u32 s3, s3, s23
    s_add_u32 m0, s3, {KC + 7 * KC_CS + 16}
    s_barrier
    """)
    k.vm("buffer_load_dwordx4 v[28:31], v7, s[16:19], s21 offen", "wm")
    k.vm("buffer_load_dwordx4 v[32:35], v7, s[16:19], s22 offen", "wm")
    k.vm("buffer_load_dwordx4 v9, s[32:35], s23 offen lds", "kc0")
    stamp(k)
    srd(k, 8, P('A_q'), 0x200000)
    k("s_mul_i32 s3, s5, 57344")
    srd_s(k, 52, P('B_w3'), 57344, 3)
    k("s_lshl_b32 s3, s5, 14")
    srd_s(k, 56, P('B_w1'), 16384, 3)
    srd_s(k, 60, P('B_w2'), 16384, 3)
    k("v_lshlrev_b32 v167, 7, v1")
    def warm(w, sr, piece):
        only_wave(k, w, lambda: k(f"s_mov_b32 s3, {8192*piece}\nbuffer_load_dword v175, v167, s[{sr}:{sr+3}], s3 offen"))
    k(f"""
    s_waitcnt lgkmcnt(0)
    s_lshl_b32 s21, s25, 16
    s_and_b32 s22, s25, 0xffff0000
    v_mov_b32 v96, s21
    v_mov_b32 v97, s22
    v_mul_f32 v98, {hx(-LOG2E)}, v96
    v_mul_f32 v99, {hx(-LOG2E)}, v97
    v_exp_f32 v98, v98
    v_exp_f32 v99, v99
    v_add_f32 v98, 1.0, v98
    v_add_f32 v99, 1.0, v99
    v_rcp_f32 v98, v98
    v_rcp_f32 v99, v99
    v_mul_f32 v96, v96, v98
    v_mul_f32 v97, v97, v99
    v_cvt_pk_bf16_f32 v98, v96, v97
    """)
    unpack(k, 96, 97, 98)
    k(f"""
    v_mul_u32_u24 v36, 288, v4
    v_lshlrev_b32 v38, 3, v5
    v_sub_u32 v36, v36, v38
    v_add_u32 v36, {TT + 120}, v36
    s_lshl_b32 s3, s6, 11
    v_lshl_add_u32 v38, v1, 5, s3
    v_lshlrev_b32 v2, 9, v5
    v_lshl_add_u32 v2, v4, 2, v2
    v_add_u32 v3, {VT}, v2
    v_add_u32 v2, {KT + 5 * 128}, v2
    v_mov_b32 v116, 0
    v_mov_b32 v117, 0
    v_mov_b32 v118, 0
    v_mov_b32 v119, 0
    v_lshrrev_b32 v112, 5, v1
    v_mul_u32_u24 v112, {UR_CH}, v112
    v_and_b32 v113, 31, v1
    v_lshl_add_u32 v112, v113, 4, v112
    v_and_b32 v113, 15, v1
    v_mul_u32_u24 v113, {KC_CS}, v113
    """)
    only_wave(k, 1, lambda: k(f"ds_write_b128 v112, v[116:119] offset:{UR + 4096}"))
    only_wave(k, 2, lambda: k(f"ds_write_b128 v113, v[116:119] offset:{KC}"))
    k.wait_vm("shk")
    k("s_barrier")
    stamp(k)
    k(f"""
    ds_read2_b32 v[10:11], v2 offset0:0 offset1:32
    ds_read2_b32 v[12:13], v2 offset0:64 offset1:96
    ds_read2_b32 v[14:15], v2 offset0:128 offset1:160
    ds_read_b32 v16, v2 offset:768
    ds_read2_b32 v[18:19], v3 offset0:0 offset1:32
    ds_read2_b32 v[20:21], v3 offset0:64 offset1:96
    """)
    def tbl():
        sync_table_issue(k, VS)
        k(f"v_mov_b32 v{VS+4}, s26\nbuffer_load_dword v{VS+3}, v{VS+4}, s[28:31], 0 offen sc1")
    only_wave(k, 0, tbl)
    unpack(k, 62, 64, 24); unpack(k, 66, 68, 25); unpack(k, 63, 65, 26); unpack(k, 67, 69, 27)
    k("s_waitcnt lgkmcnt(2)")
    for r in range(7): unpack(k, 110 + 2 * r, 111 + 2 * r, 10 + r)
    for r in range(4): k(f"v_pk_mul_f32 {pr(70+2*r)}, {pr(110+2*(r+3))}, {pr(62)}")
    for tau in range(1, 4):
        for r in range(4):
            k(f"v_pk_fma_f32 {pr(70+2*r)}, {pr(110+2*(r+3-tau))}, {pr(62+2*tau)}, {pr(70+2*r)}")
    k("s_waitcnt lgkmcnt(0)")
    for r in range(4): unpack(k, 54 + 2 * r, 55 + 2 * r, 18 + r)
    for r in range(4): k(f"v_pk_mul_f32 {pr(70+2*r)}, {pr(70+2*r)}, {pr(54+2*r)}")
    k(f"""
    v_cvt_pk_bf16_f32 v40, v76, v74
    v_cvt_pk_bf16_f32 v41, v72, v70
    v_cvt_pk_bf16_f32 v42, v77, v75
    v_cvt_pk_bf16_f32 v43, v73, v71
    ds_write_b64 v36, v[40:41]
    ds_write_b64 v36, v[42:43] offset:144
    """)
    k.wait_vm("wm")
    for e in range(4): unpack(k, 80 + 2 * e, 81 + 2 * e, 28 + e)
    for e in range(4): unpack(k, 88 + 2 * e, 89 + 2 * e, 32 + e)
    for e in range(4): k(f"v_pk_mul_f32 {pr(80+2*e)}, {pr(80+2*e)}, {pr(96)} op_sel_hi:[1,0]")
    for e in range(4): k(f"v_pk_fma_f32 {pr(80+2*e)}, {pr(88+2*e)}, {pr(96)}, {pr(80+2*e)} op_sel:[0,1,0] op_sel_hi:[1,1,1]")
    L = k.label("nomod")
    k(f"""
    ds_write_b128 v38, v[80:83] offset:{MP}
    ds_write_b128 v38, v[84:87] offset:{MP + 16}
    s_waitcnt lgkmcnt(0)
    s_barrier
    ds_read_b128 v[40:43], v39 offset:{TT}
    """)
    for w in range(8): k(f"ds_read_b32 v{48+w}, v44 offset:{MP + 2048*w}")
    k(f"""
    s_waitcnt lgkmcnt(8)
    buffer_store_dwordx4 v[40:43], v37, s[28:31], s48 offen sc1
    s_cmp_ge_u32 s6, 6
    s_cbranch_scc1 {L}
    s_waitcnt lgkmcnt(0)
    v_add_f32 v48, v48, v49
    v_add_f32 v50, v50, v51
    v_add_f32 v52, v52, v53
    v_add_f32 v54, v54, v55
    v_add_f32 v48, v48, v50
    v_add_f32 v52, v52, v54
    v_add_f32 v48, v48, v52
    buffer_store_dword v48, v44, s[28:31], s49 offen sc1
    {L}:
    """)
    stamp(k)
    srd(k, 12, P('ws'), Y2B_SZ, Y2B)
    k(f"""
    v_lshrrev_b32 v3, 8, v0
    v_mul_u32_u24 v3, {UR_CH}, v3
    v_and_b32 v4, 255, v0
    v_lshl_add_u32 v3, v4, 4, v3
    v_add_u32 v12, {UR}, v3
    v_and_b32 v28, 15, v1
    v_lshrrev_b32 v29, 4, v1
    v_and_b32 v2, 7, v28
    v_mul_u32_u24 v2, {KC_CS}, v2
    v_lshrrev_b32 v3, 3, v28
    v_add_u32 v3, v3, v29
    v_lshl_add_u32 v2, v3, 4, v2
    s_mul_i32 s3, s38, {KC_CH}
    s_add_u32 s3, s3, {KC}
    v_add_u32 v2, s3, v2                 ; A addr
    s_mul_i32 s3, s38, {UR_CH}
    s_add_u32 s3, s3, {UR + 480}
    v_lshlrev_b32 v3, 4, v29
    v_lshlrev_b32 v4, 5, v28
    v_sub_u32 v3, v3, v4
    v_add_u32 v3, s3, v3                 ; B addr
    s_add_u32 s3, s3, {4088 - 3584 - 480}
    v_lshlrev_b32 v6, 3, v29
    v_add_u32 v6, v6, v4
    v_sub_u32 v6, s3, v6
    s_lshl_b32 s3, s6, 11
    v_lshl_add_u32 v4, v1, 4, s3
    s_xor_b32 s3, s3, 4096
    v_lshl_add_u32 v5, v1, 4, s3
    v_lshrrev_b32 v26, 1, v28
    v_mul_u32_u24 v26, 40960, v26
    v_and_b32 v27, 1, v28
    v_lshlrev_b32 v27, 2, v27
    v_add_u32 v27, v27, v29
    v_lshl_add_u32 v26, v27, 3, v26
    s_add_u32 s3, s36, s38
    s_mul_i32 s3, s3, 80
    s_add_u32 s3, s3, 8
    v_add_u32 v26, s3, v26
    v_add_u32 v30, {40960 - 64}, v26
    v_add_u32 v31, {(-40960 + 64) & 0xffffffff}, v26
    v_cmp_eq_u32 vcc, 7, v27
    v_cmp_eq_u32 s[46:47], 0, v27
    v_mov_b32 v27, {OOB}
    v_cndmask_b32 v27, v27, v30, vcc
    v_cndmask_b32 v27, v27, v31, s[46:47]
    s_lshl_b32 s3, s37, 16
    s_and_b32 s7, s37, 0xffff0000
    s_cmp_eq_u32 s38, 0
    s_cselect_b32 s3, s3, s7
    v_mov_b32 v24, s3                    ; D
    v_lshlrev_b32 v13, 4, v0
    s_lshl_b32 s20, s36, 12
    s_add_u32 s20, s20, {KVT}
    v_add_u32 v14, {KC + 7 * KC_CS}, v9
    v_add_u32 v15, {KC + 7 * KC_CS + KC_CH}, v9
    s_waitcnt vmcnt(0) lgkmcnt(0)
    s_barrier
    """)
    stamp(k)
    k.vm_log = []
    LJ = k.label("cj")
    labs = [k.label(f"cp{w}_") for w in range(8)]
    for w in range(1, 8):
        k(f"s_cmp_eq_u32 s6, {w}\ns_cbranch_scc1 {labs[w]}")
    sync_table_check(k, VS)
    sync_signal(k, VS, 27, 4)
    stamp(k)
    sync_poll(k, VS, 26, 32, 4)
    k(f"s_branch {LJ}")
    for w in range(1, 8):
        a = w - 1; sft = 7 - a
        k(f"{labs[w]}:")
        k(f"v_add_u32 v16, {KC + a * KC_CS + 16}, v9\nv_add_u32 v17, {KC + a * KC_CS + 16 + KC_CH}, v9")
        for half in range(2):
            for q in range(4):
                b = 32 + 8 * (4 * half + q)
                k(f"ds_read_b128 {q4(b)}, v{14+half} offset:{1024*q}")
                k(f"ds_read_b128 {q4(b+4)}, v{14+half} offset:{1024*q + 16}")
                if half == 1 and q == 2: k("s_waitcnt lgkmcnt(8)")
        for n in range(8):
            half, q = divmod(n, 4)
            b = 32 + 8 * n
            if n % 2 == 0 and n >= 2: k(f"s_waitcnt lgkmcnt({max(0, 15 - 2*n - 3 + n)})" if False else "")
            if n == 0: k("s_waitcnt lgkmcnt(8)")
            if n == 4: k("s_waitcnt lgkmcnt(4)")
            off = 16 - 2 * sft
            if off % 4 == 0:
                x = off // 4
                if (b + x) % 2 == 0:
                    k(f"ds_write_b128 v{16+half}, {q4(b+x)} offset:{1024*q}")
                else:
                    for i in range(4): k(f"v_mov_b32 v{100+4*(n%2)+i}, v{b+x+i}")
                    k(f"ds_write_b128 v{16+half}, {q4(100+4*(n%2))} offset:{1024*q}")
            else:
                x = off // 4
                for i in range(4): k(f"v_alignbit_b32 v{100+4*(n%2)+i}, v{b+x+i+1}, v{b+x+i}, 16")
                k(f"ds_write_b128 v{16+half}, {q4(100+4*(n%2))} offset:{1024*q}")
        if w < 7: k(f"s_branch {LJ}")
    k(f"{LJ}:")
    stamp(k, 5)
    k("s_barrier")
    stamp(k)
    k("buffer_load_dwordx4 v[20:23], v13, s[28:31], s20 offen sc1")
    k(f"""
    v_and_b32 v112, 31, v1
    v_mul_u32_u24 v112, 1536, v112
    v_lshrrev_b32 v166, 5, v1
    v_lshl_add_u32 v112, v166, 2, v112
    s_mul_i32 s3, s4, {32 * 1536}
    s_lshl_b32 s7, s5, 3
    s_add_u32 s3, s3, s7
    s_add_u32 s21, s3, {MODP}
    s_lshl_b32 s22, s39, 10
    s_waitcnt vmcnt(0)
    ds_write_b128 v12, v[20:23]
    """)
    def m2a():
        for v in range(6): k(f"buffer_load_dword v{160+v}, v112, s[28:31], s21 offen offset:{256*v} sc1")
    only_wave(k, 3, m2a)
    k(f"buffer_load_dwordx4 v[{VS}:{VS+3}], v9, s[8:11], s22 offen")
    for w, (sr, pc) in zip((0, 1, 2, 4), [(56, 0), (56, 1), (60, 0), (60, 1)]): warm(w, sr, pc)
    k(f"""
    s_waitcnt lgkmcnt(0)
    s_barrier
    """)
    stamp(k)
    labs = [k.label(f"cv{x}_") for x in range(4)]
    Lend = k.label("cvend")
    k(f"""
    s_and_b32 s3, s6, 3
    s_cmp_eq_u32 s3, 1
    s_cbranch_scc1 {labs[1]}
    s_cmp_eq_u32 s3, 2
    s_cbranch_scc1 {labs[2]}
    s_cmp_eq_u32 s3, 3
    s_cbranch_scc1 {labs[3]}
    """)
    for x in range(4):
        if x: k(f"{labs[x]}:\ns_nop 7\ns_nop 7")
        conv_body(k, x & 1, x >> 1)
        if x < 3: k(f"s_branch {Lend}")
    k(f"{Lend}:\ns_nop 7\ns_waitcnt vmcnt(4)")
    stamp(k)
    dot_stats(k, 46, range(VS, VS + 4), True)
    allreduce(k, 46, (1, 2, 4, 8))
    stats_finish(k, 46, 48)
    k(f"""
    s_lshl_b32 s3, s39, 3
    s_add_u32 s3, s3, {QST}
    v_mov_b32 v50, 0
    s_mov_b64 s[46:47], exec
    s_mov_b64 exec, 1
    buffer_store_dwordx2 v[48:49], v50, s[28:31], s3 offen
    s_mov_b64 exec, s[46:47]
    """)
    def zf():
        k(f"""
        s_and_b32 s3, s5, 7
        s_lshl_b32 s3, s3, 2
        s_lshr_b32 s7, s5, 3
        s_lshl_b32 s46, s4, 2
        s_add_u32 s7, s7, s46
        s_lshl_b32 s7, s7, 7
        s_add_u32 s3, s3, s7
        s_add_u32 s3, s3, {FLAGS + 4096}
        v_mov_b32 v51, s3
        s_and_b32 s3, s5, 15
        s_lshl_b32 s3, s3, 2
        s_lshr_b32 s7, s5, 4
        s_lshl_b32 s46, s4, 1
        s_add_u32 s7, s7, s46
        s_lshl_b32 s7, s7, 7
        s_add_u32 s3, s3, s7
        s_add_u32 s3, s3, {FLAGS + 8192}
        v_writelane_b32 v51, s3, 1
        s_add_u32 s3, s3, 4096
        v_writelane_b32 v51, s3, 2
        s_mov_b64 s[46:47], exec
        s_mov_b64 exec, 7
        buffer_store_dword v50, v51, s[28:31], 0 offen
        s_mov_b64 exec, s[46:47]
        """)
    only_wave(k, 1, zf)
    def m2b():
        for rot in (1, 2, 4, 8):
            for v in range(6):
                k(f"v_add_f32_dpp v{160+v}, v{160+v}, v{160+v} row_ror:{rot} row_mask:0xf bank_mask:0xf")
        for v in range(6): k(f"v_mov_b32 v{120+v}, v{160+v}")
        for v in range(6): k(f"v_permlane16_swap_b32 v{160+v}, v{120+v}")
        for v in range(6): k(f"v_add_f32 v{114+v}, v{160+v}, v{120+v}")
        for p in range(3): k(f"v_cvt_pk_bf16_f32 v{120+p}, v{114+2*p}, v{115+2*p}")
        for p in range(3): unpack(k, 114 + 2 * p, 115 + 2 * p, 120 + p)
        k(f"""
        v_add_f32 v115, 1.0, v115
        v_add_f32 v118, 1.0, v118
        v_cvt_pk_bf16_f32 v120, v115, v118
        """)
        unpack(k, 115, 118, 120)
        k(f"""
        v_mul_f32 v120, v116, v115
        v_mul_f32 v121, v116, v114
        v_and_b32 v112, 31, v1
        v_lshlrev_b32 v113, 2, v166
        v_cmp_ne_u32 vcc, 0, v112
        v_mov_b32 v112, {OOB}
        v_cndmask_b32 v113, v113, v112, vcc
        s_lshl_b32 s3, s36, 2
        s_add_u32 s3, s3, {MODC}
        s_add_u32 s7, s3, 4096
        s_add_u32 s20, s3, 8192
        buffer_store_dword v120, v113, s[28:31], s3 offen
        buffer_store_dword v121, v113, s[28:31], s3 offen offset:2048
        buffer_store_dword v118, v113, s[28:31], s7 offen
        buffer_store_dword v117, v113, s[28:31], s7 offen offset:2048
        buffer_store_dword v119, v113, s[28:31], s20 offen
        """)
    only_wave(k, 3, m2b)
    if TAILWARM:
        LW = k.label("tw")
        k(f"""
        s_cmp_eq_u32 s6, 7
        s_cbranch_scc1 {LW}
        s_lshl_b32 s3, s6, 13
        buffer_load_dword v175, v167, s[52:55], s3 offen
        {LW}:
        """)
    finish(k, 0)
    return k


YX = 131072; CONSTL = 122880
K2_LDS = 163840

def gelu_items(k, regs, tmp, c1):
    n = len(regs); L = []
    for i, r in enumerate(regs): L.append(f"v_pk_mul_f32 {pr(tmp+2*i)}, {pr(r)}, {pr(r)}")
    for i, r in enumerate(regs): L.append(f"v_pk_fma_f32 {pr(tmp+2*i)}, {pr(tmp+2*i)}, s[52:53], {pr(c1)} op_sel_hi:[1,1,0]")
    for i, r in enumerate(regs): L.append(f"v_pk_mul_f32 {pr(tmp+2*i)}, {pr(tmp+2*i)}, {pr(r)}")
    for i in range(2 * n): L.append(f"v_exp_f32 v{tmp+i}, v{tmp+i}")
    for i, r in enumerate(regs): L.append(f"v_pk_add_f32 {pr(tmp+2*i)}, {pr(tmp+2*i)}, 1.0 op_sel_hi:[1,0]")
    for i in range(2 * n): L.append(f"v_rcp_f32 v{tmp+i}, v{tmp+i}")
    for i, r in enumerate(regs): L.append(f"v_pk_mul_f32 {pr(r)}, {pr(r)}, {pr(tmp+2*i)}")
    return L

def w64_dma_lane(k, dst, rowbytes, t1):
    k(f"""
    v_lshrrev_b32 v{t1}, 3, v1
    v_mul_u32_u24 v{dst}, {rowbytes}, v{t1}
    v_lshrrev_b32 v{t1}, 4, v1
    v_lshlrev_b32 v{t1}, 1, v{t1}
    v_xor_b32 v{t1}, v{t1}, v1
    v_and_b32 v{t1}, 7, v{t1}
    v_lshl_add_u32 v{dst}, v{t1}, 4, v{dst}
    """)
def w64_tr_lane(k, dst, t1, t2):
    k(f"""
    v_lshrrev_b32 v{t1}, 2, v1
    v_lshlrev_b32 v{dst}, 7, v{t1}
    v_and_b32 v{t1}, 6, v{t1}
    v_bfe_u32 v{t2}, v1, 1, 1
    v_add_u32 v{t1}, v{t1}, v{t2}
    v_lshl_add_u32 v{dst}, v{t1}, 4, v{dst}
    v_and_b32 v{t2}, 1, v1
    v_lshl_add_u32 v{dst}, v{t2}, 3, v{dst}
    """)

def kernel_2():
    k = KK("k2_kernel", vgpr=254, sgpr=100)
    VS = 248
    V_L16 = 232; V_D1K = 233; V_D35 = 234; V_TR = 235; V_GC1 = 236
    V_X1 = 240; V_X1P = 244
    bc = "op_sel:[0,0,1] op_sel_hi:[1,0,1]"
    entry(k)
    k(f"""
    s_lshr_b32 s3, s5, 2
    s_lshl_b32 s48, s4, 3
    s_add_u32 s48, s48, s3
    s_and_b32 s49, s5, 3
    s_lshr_b32 s3, s49, 1
    s_add_u32 s3, s3, 1
    s_sub_u32 s7, 0, s3
    s_bitcmp1_b32 s49, 0
    s_cselect_b32 s50, s3, s7
    s_mov_b32 s51, {ONES}
    s_lshr_b32 s25, s6, 2
    s_and_b32 s26, s6, 3
    s_lshl_b32 s23, s6, 10
    v_lshrrev_b32 v2, 2, v1
    v_mul_u32_u24 v2, 80, v2
    v_lshrrev_b32 v3, 5, v1
    s_lshl_b32 s3, s6, 1
    v_add_u32 v3, s3, v3
    v_xor_b32 v3, v3, v1
    v_and_b32 v3, 3, v3
    v_lshl_add_u32 v2, v3, 4, v2
    s_mul_i32 s20, s48, 40960
    s_mul_i32 s3, s6, 1280
    s_add_u32 s20, s20, s3
    s_lshl_b32 s3, s50, 1
    s_add_u32 s20, s20, s3
    s_add_u32 s20, s20, 8
    v_and_b32 v4, 3, v1                 ; t
    v_lshrrev_b32 v5, 2, v1             ; c
    s_lshl_b32 s21, s48, 5
    s_add_u32 s21, s21, s50
    s_lshl_b32 s3, s6, 2
    s_add_u32 s21, s21, s3
    v_add_u32 v6, s21, v4               ; ts
    v_lshlrev_b32 v7, 10, v6
    v_lshl_add_u32 v7, v5, 4, v7        ; q offset
    v_lshlrev_b32 v44, 3, v6
    v_lshlrev_b32 v{V_L16}, 4, v1
    s_waitcnt lgkmcnt(0)
    """)
    srd(k, 8, P('ws'), Y2B_SZ, Y2B)
    srd(k, 12, P('A_q'), 0x200000)
    srd(k, 28, P('ws'), WS_END)
    srd(k, 32, P('ws'), QST_SZ, QST)
    for a in range(4):
        k(f"s_add_u32 m0, s23, {YX + 8192 * a}\ns_add_u32 s3, s20, {10240 * a}")
        k.vm("buffer_load_dwordx4 v2, s[8:11], s3 offen lds", "crit")
    k(f"s_add_u32 m0, s23, {CONSTL}\ns_add_u32 s3, s23, {MODC}")
    k.vm(f"buffer_load_dwordx4 v{V_L16}, s[28:31], s3 offen lds", "crit")
    for i4 in range(4):
        k.vm(f"buffer_load_dwordx4 {q4(8+4*i4)}, v7, s[12:15], 0 offen offset:{256*i4}", "crit")
    k.vm("buffer_load_dwordx2 v[42:43], v44, s[32:35], 0 offen", "crit")
    srd(k, 16, P('B_w1'), 0x80000)
    srd(k, 40, P('dbg'), 256)
    sync_init(k, VS)
    k(f"""
    v_lshrrev_b32 v40, 4, v1
    s_and_b32 s3, s6, 2
    s_lshl_b32 s3, s3, 1
    v_or_b32 v41, s3, v40
    v_lshlrev_b32 v41, 1, v41
    v_and_b32 v45, 15, v1
    v_xor_b32 v41, v41, v45
    v_lshlrev_b32 v40, 10, v40
    v_lshl_add_u32 v224, v41, 4, v40
    s_lshl_b32 s22, s6, 12
    s_lshl_b32 s3, s49, 8
    s_add_u32 s22, s22, s3
    s_barrier
    """)
    only_wave(k, 0, lambda: sync_publish(k, VS))
    def w1dma(a):
        k(f"s_add_u32 m0, s23, {8192 * a}\ns_add_u32 s7, s22, {32768 * a}")
        k.vm("buffer_load_dwordx4 v224, s[16:19], s7 offen lds", "w1" if a < 15 else "w1t")
    for a in range(8): w1dma(a)
    k.bg([(lambda a: (lambda: w1dma(a)))(a) for a in range(8, 15)])
    stamp(k)
    k(f"""
    v_lshrrev_b32 v44, 4, v1            ; gq
    v_bfe_u32 v45, v1, 2, 2             ; r
    v_and_b32 v46, 3, v1                ; q'
    v_lshlrev_b32 v47, 5, v44
    v_lshl_add_u32 v47, v46, 3, v47
    v_add_u32 v47, v47, v45
    v_lshlrev_b32 v47, 6, v47
    s_lshr_b32 s3, s6, 1
    v_xor_b32 v48, s3, v46
    v_lshl_add_u32 v47, v48, 4, v47
    s_and_b32 s3, s6, 1
    s_lshl_b32 s3, s3, 3
    s_add_u32 s3, s3, {YX}
    v_add_u32 v47, s3, v47
    v_lshlrev_b32 v48, 5, v5
    v_add_u32 v48, {CONSTL}, v48
    v_lshrrev_b32 v49, 4, v6
    v_lshlrev_b32 v49, 14, v49
    v_lshrrev_b32 v50, 2, v5
    v_lshl_add_u32 v49, v50, 10, v49
    v_and_b32 v50, 1, v5
    v_lshl_add_u32 v49, v50, 9, v49
    v_and_b32 v50, 15, v6
    v_lshl_add_u32 v49, v50, 4, v49
    v_bfe_u32 v50, v5, 1, 1
    v_lshl_add_u32 v49, v50, 3, v49
    s_lshl_b32 s3, s48, 5
    s_lshl_b32 s7, s49, 3
    s_add_u32 s3, s3, s7
    v_subrev_u32 v50, s3, v6
    v_cmp_lt_u32 vcc, 7, v50
    v_mov_b32 v50, {OOB}
    v_cndmask_b32 v49, v49, v50, vcc
    v_lshlrev_b32 v51, 3, v6
    v_cndmask_b32 v51, v51, v50, vcc
    v_cmp_lt_u32 vcc, 3, v1
    v_cndmask_b32 v225, v51, v50, vcc
    s_sub_u32 s24, s21, s3
    s_add_u32 s24, s24, 3
    v_lshrrev_b32 v50, 2, v5
    v_lshlrev_b32 v50, 10, v50
    v_and_b32 v51, 3, v5
    v_lshl_add_u32 v50, v51, 8, v50
    v_lshl_add_u32 v50, v4, 4, v50
    s_lshl_b32 s3, s25, 14
    s_lshl_b32 s7, s26, 6
    s_add_u32 s3, s3, s7
    s_add_u32 s3, s3, {YX}
    v_add_u32 v50, s3, v50
    s_lshl_b32 s3, s25, 14
    s_lshl_b32 s7, s25, 13
    s_add_u32 s3, s3, s7
    s_add_u32 s3, s3, {YX}
    v_add_u32 v226, s3, v{V_L16}
    s_xor_b32 s3, s3, 16384
    v_add_u32 v227, s3, v{V_L16}
    v_lshl_add_u32 v228, v44, 3, v45
    v_lshlrev_b32 v228, 8, v228
    v_and_b32 v229, 1, v44
    v_lshl_add_u32 v229, v229, 2, v45
    v_lshlrev_b32 v229, 1, v229
    s_lshl_b32 s3, s26, 2
    v_xor_b32 v229, s3, v229
    v_lshrrev_b32 v51, 1, v46
    v_add_u32 v229, v229, v51
    v_lshl_add_u32 v228, v229, 4, v228
    v_and_b32 v51, 1, v46
    v_lshl_add_u32 v228, v51, 3, v228
    s_lshl_b32 s3, s25, 16
    v_add_u32 v228, s3, v228            ; W1 tr h=0
    v_xor_b32 v229, 32, v228            ; W1 tr h=1
    v_mov_b32 v{V_GC1}, {hx(GC1)}
    s_mov_b32 s52, {hx(GC2)}
    s_mov_b32 s53, {hx(GC2)}
    """)
    w64_dma_lane(k, V_D1K, 1024, 51)
    w64_dma_lane(k, V_D35, 3584, 51)
    w64_tr_lane(k, V_TR, 51, 52)
    k(f"""
    s_lshr_b32 s3, s5, 3
    s_lshl_b32 s54, s4, 2
    s_add_u32 s54, s54, s3              ; M2
    s_and_b32 s55, s5, 7                ; nt
    s_lshl_b32 s27, s54, 2
    s_add_u32 s27, s27, s26
    s_lshr_b32 s3, s5, 4
    s_lshl_b32 s56, s4, 1
    s_add_u32 s56, s56, s3              ; M3
    s_and_b32 s57, s5, 15               ; nt3
    s_lshl_b32 s36, s6, 13
    s_lshl_b32 s3, s55, 7
    s_add_u32 s36, s36, s3
    s_mul_i32 s37, s6, 28672
    s_lshl_b32 s3, s57, 8
    s_add_u32 s37, s37, s3
    s_mul_i32 s38, s25, {28 * 32768}
    s_lshl_b32 s3, s26, 13
    s_add_u32 s38, s38, s3
    s_lshl_b32 s3, s55, 7
    s_add_u32 s38, s38, s3
    s_lshl_b32 s39, s26, 10
    """)
    srd(k, 60, P('B_w3'), 512 * 3584)
    k(f"s_cmp_ge_u32 s57, 14\ns_cselect_b32 s62, 0, s62")
    k.wait_vm("crit")
    k("s_barrier")
    stamp(k)
    for i4 in range(4):
        for h in range(2):
            k(f"ds_read_b64_tr_b16 {pr(24+4*i4+2*h)}, v47 offset:{8192*i4 + 256*h}")
    def cl(vec, dst, n):
        k(f"ds_read_b128 {q4(dst+4*n)}, v48 offset:{2048*vec + 512*(n//2) + 16*(n%2)}")
    seq = []
    for n in range(8): seq += [(0, 64, n), (1, 96, n)]
    for x in seq[:6]: cl(*x)
    ci = 6
    for p in range(16):
        x = 192 + 2 * p; t = 52 + 4 * (p & 1)
        if p % 2 == 0:
            pass
        unpack(k, x, x + 1, 8 + p)
        if p % 2 == 0:
            k("s_waitcnt lgkmcnt(4)" if p < 14 else "s_waitcnt lgkmcnt(4)")
        unpack(k, t, t + 1, 24 + p)
        k(f"""
        v_pk_fma_f32 {pr(t+2)}, {pr(x)}, v[42:43], v[42:43] {bc}
        v_pk_fma_f32 {pr(t+2)}, {pr(t+2)}, {pr(64+2*p)}, {pr(96+2*p)}
        v_pk_fma_f32 {pr(x)}, {pr(t+2)}, {pr(t)}, {pr(x)}
        v_cvt_pk_bf16_f32 v{8+p}, v{x}, v{x+1}
        """)
        if p % 2 == 1:
            for _ in range(2):
                if ci < 16: cl(*seq[ci])
                else:
                    n = (ci - 16) // 2
                    cl(2 + (ci % 2), 64 + 32 * (ci % 2), n)
                ci += 1
            k.tick()
    while ci < 32:
        n = (ci - 16) // 2
        cl(2 + (ci % 2), 64 + 32 * (ci % 2), n); ci += 1
        if ci == 28: k("s_waitcnt lgkmcnt(8)")
    k.flush()
    dot_stats(k, 40, range(8, 24), True)
    stamp(k)
    for i4 in range(4):
        k(f"s_mov_b32 s3, {X1 + 4096 * i4}")
        for a in range(2):
            k.vm(f"buffer_store_dwordx2 {pr(8+4*i4+2*a)}, v49, s[28:31], s3 offen offset:{256*a} sc1", "x1st")
    allreduce(k, 40, (4, 8))
    stats_finish(k, 40, 42)
    k(f"s_mov_b32 s3, {ST2}")
    k.vm("buffer_store_dwordx2 v[42:43], v225, s[28:31], s3 offen sc1", "st2")
    k.wait_vm("w1", extra="lgkmcnt(0)")
    k("s_barrier")
    stamp(k)
    w1dma(15)
    def wrd(ks):
        for h in range(2):
            for jh in range(2):
                k(f"ds_read_b64_tr_b16 {pr(128+8*ks+4*h+2*jh)}, v{228+h} offset:{8192*ks + 1024*jh}")
    for p in range(16):
        x = 192 + 2 * p
        k(f"""
        v_pk_fma_f32 {pr(x)}, {pr(x)}, v[42:43], v[42:43] {bc}
        v_pk_fma_f32 {pr(x)}, {pr(x)}, {pr(64+2*p)}, {pr(96+2*p)}
        v_cvt_pk_bf16_f32 v{24+p}, v{x}, v{x+1}
        """)
        if p % 2 == 0 and p // 2 < 7:
            if p >= 6: k("s_waitcnt lgkmcnt(8)")
            wrd(p // 2)
    dot_stats(k, 40, range(24, 40), True)
    allreduce(k, 40, (4, 8))
    stats_finish(k, 40, 42)
    srd(k, 16, P('B_w2'), 0x80000)
    k.wait_vm("w1t", extra="lgkmcnt(0)")
    k("s_barrier")
    stamp(k)
    wrd(7)
    def w2dma(a):
        k(f"s_add_u32 m0, s23, {8192 * a}\ns_add_u32 s7, s36, {65536 * a}")
        k.vm(f"buffer_load_dwordx4 v{V_D1K}, s[16:19], s7 offen lds", "w2")
    W3R = [65536, 0]
    def w3dma(nh, a):
        k(f"s_add_u32 m0, s23, {W3R[nh] + 8192 * a}\ns_add_u32 s7, s37, {128 * nh + 8 * 28672 * a}")
        k.vm(f"buffer_load_dwordx4 v{V_D35}, s[60:63], s7 offen lds", f"w3{nh}")
    k.bg([(lambda a: (lambda: w2dma(a)))(a) for a in range(8)])
    k.bg([(lambda a: (lambda: w3dma(0, a)))(a) for a in range(8)])
    for p in range(16):
        x = 192 + 2 * p
        k(f"""
        v_pk_fma_f32 {pr(x)}, {pr(x)}, v[42:43], v[42:43] {bc}
        v_cvt_pk_bf16_f32 v{64+p}, v{x}, v{x+1}
        """)
        if p % 4 == 3:
            k(f"ds_write_b128 v50, {q4(64+p-3)} offset:{4096*(p//4)}")
            k.tick()
    k("s_waitcnt lgkmcnt(0)\ns_barrier")
    stamp(k)
    def xrd(ks):
        for mu in range(2): k(f"ds_read_b128 {q4(64+8*ks+4*mu)}, v{226+mu} offset:{1024*ks}")
    for ks in range(4): xrd(ks)
    for ks in range(8):
        k(f"s_waitcnt lgkmcnt({2 * (min(8, ks + 4) - ks - 1)})")
        for h in range(2):
            for mu in range(2):
                a = 192 + 8 * h + 4 * mu
                c = q4(a) if ks else "0"
                k(f"v_mfma_f32_16x16x32_bf16 {q4(a)}, {q4(128+8*ks+4*h)}, {q4(64+8*ks+4*mu)}, {c}")
        if ks + 4 < 8: xrd(ks + 4)
        k.tick()
    k(f"""
    s_lshl_b32 s3, s6, 11
    s_add_u32 s3, s3, {YX}
    v_add_u32 v230, s3, v{V_L16}
    s_xor_b32 s3, s3, 8192
    v_add_u32 v231, s3, v{V_L16}
    v_and_b32 v54, 15, v1
    s_lshl_b32 s3, s48, 5
    s_lshl_b32 s7, s25, 4
    s_add_u32 s3, s3, s7
    s_add_u32 s3, s3, s50
    v_add_u32 v54, s3, v54
    v_cmp_gt_u32 vcc, 2048, v54
    s_lshl_b32 s3, s48, 1
    s_add_u32 s3, s3, s25
    s_lshl_b32 s3, s3, 4
    s_lshl_b32 s7, s49, 2
    s_add_u32 s3, s3, s7
    s_add_u32 s3, s3, s26
    s_lshl_b32 s3, s3, 10
    s_add_u32 s20, s3, {HS}
    s_barrier
    ds_write_b128 v230, v[196:199]
    ds_write_b128 v230, v[204:207] offset:1024
    """)
    stamp(k)
    k.tick(2)
    only_wave(k, 0, lambda: sync_table_issue(k, VS))
    k(f"""
    s_waitcnt lgkmcnt(0)
    s_barrier
    ds_read_b128 v[196:199], v231
    ds_read_b128 v[204:207], v231 offset:1024
    """)
    k.tick(2)
    k(f"""
    s_waitcnt lgkmcnt(0)
    v_pk_add_f32 v[192:193], v[192:193], v[196:197]
    v_pk_add_f32 v[194:195], v[194:195], v[198:199]
    v_pk_add_f32 v[200:201], v[200:201], v[204:205]
    v_pk_add_f32 v[202:203], v[202:203], v[206:207]
    """)
    assert not k.bgq
    for l in gelu_items(k, [192, 194, 200, 202], 208, V_GC1): k(l)
    k(f"""
    v_cvt_pk_bf16_f32 v196, v192, v193
    v_cvt_pk_bf16_f32 v197, v194, v195
    v_cvt_pk_bf16_f32 v198, v200, v201
    v_cvt_pk_bf16_f32 v199, v202, v203
    v_cndmask_b32 v196, 0, v196, vcc
    v_cndmask_b32 v197, 0, v197, vcc
    v_cndmask_b32 v198, 0, v198, vcc
    v_cndmask_b32 v199, 0, v199, vcc
    buffer_store_dwordx4 v[196:199], v{V_L16}, s[28:31], s20 offen sc1
    """)
    stamp(k)
    k(f"""
    s_lshl_b32 s58, s54, 7
    s_add_u32 s58, s58, {FLAGS + 4096}
    s_lshl_b32 s3, s55, 2
    s_add_u32 s59, s58, s3
    s_and_b32 s24, s5, 24
    """)
    k(f"s_lshl_b32 s3, s25, 6\ns_lshl_b32 s22, s25, 15")
    for eta in range(4):
        k(f"s_xor_b32 s7, s3, {32 * eta}\nv_xor_b32 v{56+eta}, s7, v{V_TR}\nv_add_u32 v{56+eta}, s22, v{56+eta}")
    k(f"""
    s_lshl_b32 s3, s27, 4
    s_lshl_b32 s7, s25, 3
    s_add_u32 s3, s3, s7
    s_lshl_b32 s3, s3, 10
    s_add_u32 s20, s3, {HS}
    s_add_u32 s21, s20, 4096
    s_lshl_b32 s3, s27, 4
    s_lshl_b32 s7, s55, 1
    s_add_u32 s3, s3, s7
    s_add_u32 s3, s3, s25
    s_lshl_b32 s48, s3, 10
    v_and_b32 v60, 15, v1
    v_lshlrev_b32 v61, 3, v60
    v_lshrrev_b32 v62, 4, v1
    v_lshlrev_b32 v62, 4, v62
    s_lshl_b32 s3, s55, 8
    s_lshl_b32 s7, s25, 7
    s_add_u32 s49, s3, s7
    s_waitcnt vmcnt(0)
    s_barrier
    """)
    k.vm_log = []
    stamp(k)
    def sig1():
        sync_table_check(k, VS)
        sync_signal(k, VS, 59, 4)
    only_wave(k, 0, sig1)
    def preread(addr, n0=0, n1=32, dst=64):
        for phi in range(n0, n1):
            v, off = addr(phi)
            if phi - n0 >= 7 : k("s_waitcnt lgkmcnt(12)")
            k(f"ds_read_b64_tr_b16 {pr(dst+4*phi)}, v{v} offset:{off}")
            k(f"ds_read_b64_tr_b16 {pr(dst+4*phi+2)}, v{v} offset:{off + 2048}")
    preread(lambda phi: (56 + phi % 4, 4096 * (phi // 4)))
    k(f"s_add_u32 s3, s49, {MODC + 4096}")
    for v in range(2):
        for e in range(2):
            k.vm(f"buffer_load_dwordx4 {q4(192+8*v+4*e)}, v62, s[28:31], s3 offen offset:{2048*v + 64*e}", "cc")
    only_wave(k, 0, lambda: sync_poll(k, VS, 58, 8, 4, s_first=24))
    k("s_waitcnt lgkmcnt(0)\ns_barrier")
    stamp(k)
    for a in range(8):
        k.vm(f"buffer_load_dwordx4 {q4(8+4*a)}, v{V_L16}, s[28:31], s{20 + a // 4} offen offset:{1024*(a%4)} sc1", f"x{a}")
    k(f"s_add_u32 s3, s48, {X1}")
    k.vm(f"buffer_load_dwordx4 {q4(V_X1)}, v{V_L16}, s[28:31], s3 offen sc1", "ep")
    k(f"s_lshl_b32 s3, s27, 7\ns_add_u32 s3, s3, {ST2}")
    k.vm(f"buffer_load_dwordx2 v[208:209], v61, s[28:31], s3 offen sc1", "ep")
    k("s_barrier")
    k.bg([(lambda a: (lambda: w3dma(1, a)))(a) for a in range(8)])
    for ks in range(8):
        k.wait_vm(f"x{ks}")
        for eta in range(4):
            c = q4(40 + 4 * eta) if ks else "0"
            k(f"v_mfma_f32_16x16x32_bf16 {q4(40+4*eta)}, {q4(64+16*ks+4*eta)}, {q4(8+4*ks)}, {c}")
        k.tick()
    stamp(k)
    k(f"""
    v_lshlrev_b32 v4, 7, v60
    v_lshrrev_b32 v5, 5, v1
    v_lshl_add_u32 v4, v5, 2, v4
    v_and_b32 v5, 16, v1
    v_lshl_add_u32 v4, v5, 26, v4
    s_lshl_b32 s3, s27, 11
    s_lshl_b32 s7, s55, 4
    s_add_u32 s3, s3, s7
    s_lshl_b32 s7, s25, 3
    s_add_u32 s3, s3, s7
    s_add_u32 s20, s3, {STAT}
    s_add_u32 s21, s48, {X1P}
    ds_write_b128 v230, v[48:51]
    ds_write_b128 v230, v[52:55] offset:1024
    """)
    k.wait_vm("ep")
    for e in range(4): unpack(k, 8 + 2 * e, 9 + 2 * e, V_X1 + e)
    for e in range(4): k(f"v_pk_fma_f32 {pr(8+2*e)}, {pr(8+2*e)}, v[208:209], v[208:209] {bc}")
    for e in range(4): k(f"v_pk_fma_f32 {pr(8+2*e)}, {pr(8+2*e)}, {pr(192+2*e)}, {pr(200+2*e)}")
    k(f"""
    s_waitcnt lgkmcnt(0)
    s_barrier
    ds_read_b128 v[48:51], v231
    ds_read_b128 v[52:55], v231 offset:1024
    """)
    for e in range(4): k(f"v_cvt_pk_bf16_f32 v{16+e}, v{8+2*e}, v{9+2*e}")
    for e in range(4): unpack(k, 8 + 2 * e, 9 + 2 * e, 16 + e)
    for e in range(4): k(f"v_pk_add_f32 {pr(40+2*e)}, {pr(40+2*e)}, {pr(8+2*e)}")
    k("s_waitcnt lgkmcnt(0)")
    for e in range(4): k(f"v_pk_add_f32 {pr(40+2*e)}, {pr(40+2*e)}, {pr(48+2*e)}")
    for e in range(4): k(f"v_cvt_pk_bf16_f32 v{V_X1P+e}, v{40+2*e}, v{41+2*e}")
    k(f"buffer_store_dwordx4 {q4(V_X1P)}, v{V_L16}, s[28:31], s21 offen sc1")
    dot_stats(k, 50, range(V_X1P, V_X1P + 4), True)
    k(f"""
    v_permlane32_swap_b32 v50, v51
    v_add_f32 v50, v50, v51
    v_mov_b32 v51, v50
    v_permlane16_swap_b32 v50, v51
    v_add_f32 v50, v50, v51
    buffer_store_dword v50, v4, s[28:31], s20 offen sc1
    """)
    stamp(k)
    srd(k, 16, P('B_w4'), 1792 * 1024)
    k(f"""
    s_lshl_b32 s58, s56, 7
    s_add_u32 s58, s58, {FLAGS + 8192}
    s_lshl_b32 s3, s57, 2
    s_add_u32 s59, s58, s3
    s_and_b32 s24, s5, 16
    s_and_b32 s3, s26, 1
    s_lshl_b32 s3, s3, 6
    v_xor_b32 v56, s3, v{V_TR}
    s_lshr_b32 s3, s26, 1
    s_xor_b32 s3, s3, 1
    s_lshl_b32 s3, s3, 16
    v_add_u32 v56, s3, v56
    v_xor_b32 v57, 32, v56
    s_lshl_b32 s3, s25, 16
    v_add_u32 v58, s3, v{V_L16}
    s_lshl_b32 s21, s25, 16
    s_lshl_b32 s3, s26, 12
    s_add_u32 s21, s21, s3
    s_lshl_b32 s20, s56, 17
    s_add_u32 s20, s20, s21
    s_add_u32 s20, s20, {X1P}
    v_lshlrev_b32 v59, 5, v0
    s_lshl_b32 s22, s56, 14
    s_add_u32 s22, s22, {STAT}
    v_lshrrev_b32 v60, 2, v0
    v_lshlrev_b32 v60, 3, v60
    v_add_u32 v60, {K2_LDS - 1024}, v60
    s_lshl_b32 s3, s25, 9
    s_add_u32 s3, s3, {K2_LDS - 1024}
    v_add_u32 v61, s3, v61
    s_lshl_b32 s50, s56, 3
    s_lshl_b32 s3, s25, 2
    s_add_u32 s50, s50, s3
    s_mul_i32 s50, s50, 56
    s_lshl_b32 s3, s57, 2
    s_add_u32 s50, s50, s3
    s_add_u32 s50, s50, s26
    s_lshl_b32 s50, s50, 10
    s_add_u32 s50, s50, {H3}
    v_mov_b32 v8, {ONES}
    v_mov_b32 v9, {ONES}
    v_mov_b32 v10, {ONES}
    v_mov_b32 v11, {ONES}
    s_waitcnt vmcnt(0)
    s_barrier
    """)
    k.vm_log = []
    stamp(k)
    only_wave(k, 0, lambda: sync_signal(k, VS, 59, 5))
    slots = {}
    def slot_addr(n):
        raise NotImplementedError
    amap = {}
    for j in range(3): amap[j] = (131072 + 4096 * j, 12288)
    for j in range(16): amap[3 + j] = (4096 * j, 65536)
    amap[19] = (131072 + 24576, 4096)
    for j in range(8): amap[20 + j] = amap[j]
    k(f"""
    s_mul_i32 s32, s25, 12288
    s_add_u32 s32, s32, s39
    s_lshl_b32 s33, s25, 16
    s_add_u32 s33, s33, s39
    s_lshl_b32 s34, s25, 12
    s_add_u32 s34, s34, s39
    """)
    sb = {12288: 32, 65536: 33, 4096: 34}
    def w4dma(kap):
        A, B = amap[kap]
        k(f"s_add_u32 m0, s{sb[B]}, {A}\ns_add_u32 s7, s38, {32768 * kap}")
        k.vm(f"buffer_load_dwordx4 v{V_D1K}, s[16:19], s7 offen lds", f"w4_{kap}")
    LI = k.label("idle3"); LG4 = k.label("g4")
    k(f"s_cmp_ge_u32 s57, 14\ns_cbranch_scc1 {LI}")
    preread(lambda phi: (56 + phi % 2, 4096 * (phi // 2)))
    only_wave(k, 0, lambda: sync_poll(k, VS, 58, 16, 5, s_first=24))
    k("s_waitcnt lgkmcnt(0)\ns_barrier")
    stamp(k)
    def xdma(mu, a):
        if a == 0: k(f"s_add_u32 m0, s21, {16384 * mu}\ns_add_u32 s35, s20, {16384 * mu}")
        k.vm(f"buffer_load_dwordx4 v{V_L16}, s[28:31], s35 offen offset:{1024*a} sc1 lds", f"xs{mu}")
    k.vm("buffer_load_dwordx4 v[16:19], v59, s[28:31], s22 offen sc1", "stat")
    k.vm("buffer_load_dwordx4 v[20:23], v59, s[28:31], s22 offen offset:16 sc1", "stat")
    for a in range(4): xdma(0, a)
    k("s_barrier")
    for a in range(4): xdma(1, a)
    for ks in range(16):
        for e in range(2):
            c = q4(192 + 4 * e) if ks else "0"
            k(f"v_mfma_f32_16x16x32_bf16 {q4(192+4*e)}, {q4(64+8*ks+4*e)}, v[8:11], {c}")
    k.wait_vm("stat")
    k(f"""
    v_pk_add_f32 v[16:17], v[16:17], v[18:19]
    v_pk_add_f32 v[20:21], v[20:21], v[22:23]
    v_pk_add_f32 v[16:17], v[16:17], v[20:21]
    v_add_f32_dpp v16, v16, v16 quad_perm:[1,0,3,2] row_mask:0xf bank_mask:0xf
    v_add_f32_dpp v17, v17, v17 quad_perm:[1,0,3,2] row_mask:0xf bank_mask:0xf
    v_add_f32_dpp v16, v16, v16 quad_perm:[2,3,0,1] row_mask:0xf bank_mask:0xf
    v_add_f32_dpp v17, v17, v17 quad_perm:[2,3,0,1] row_mask:0xf bank_mask:0xf
    """)
    stats_finish(k, 16, 18)
    k("ds_write_b64 v60, v[18:19]")
    epi = []
    for mu in range(4):
        k.wait_vm(f"xs{mu}", extra="lgkmcnt(0)")
        k("s_barrier")
        stamp(k)
        acc = 200 + 8 * (mu & 1)
        dm = []
        if mu + 2 < 4: dm.append((lambda m: (lambda: [xdma(m, a) for a in range(4)]))(mu + 2))
        if mu == 0: dm += [(lambda kap: (lambda: w4dma(kap)))(kap) for kap in range(3)]
        else: dm += [(lambda kap: (lambda: w4dma(kap)))(kap) for kap in range(3 + 4 * (mu - 1), 3 + 4 * mu)]
        if mu == 0:
            for m in range(4): k(f"ds_read_b64 {pr(216+2*m)}, v61 offset:{128*m}")
        D = 6
        def xr(ks): k(f"ds_read_b128 {q4(8+4*(ks%8))}, v58 offset:{16384*mu + 1024*ks}")
        for ks in range(D): xr(ks)
        for ks in range(16):
            k(f"s_waitcnt lgkmcnt({min(D, 16 - ks) - 1})")
            for e in range(2):
                c = q4(acc + 4 * e) if ks else "0"
                k(f"v_mfma_f32_16x16x32_bf16 {q4(acc+4*e)}, {q4(64+8*ks+4*e)}, {q4(8+4*(ks%8))}, {c}")
                for _ in range(2):
                    if epi and ks >= 1: epi.pop(0)()
            if ks + D < 16: xr(ks + D)
            if dm and ks % 3 == 0: dm.pop(0)()
        while dm: dm.pop(0)()
        while epi: epi.pop(0)()
        st = 216 + 2 * mu
        items = []
        for p in range(4): items.append(f"v_pk_mul_f32 {pr(40+2*p)}, {pr(192+2*p)}, {pr(st)} op_sel:[0,1] op_sel_hi:[1,1]")
        for p in range(4): items.append(f"v_pk_fma_f32 {pr(acc+2*p)}, {pr(acc+2*p)}, {pr(st)}, {pr(40+2*p)} op_sel_hi:[1,0,1]")
        items += gelu_items(k, [acc + 2 * p for p in range(4)], 40, V_GC1)
        for p in range(4): items.append(f"v_cvt_pk_bf16_f32 v{48+p}, v{acc+2*p}, v{acc+2*p+1}")
        epi = [(lambda t: (lambda: k(t)))(t) for t in items]
        def st_(mu=mu):
            k(f"s_add_u32 s7, s50, {57344 * mu}")
            k.vm(f"buffer_store_dwordx4 v[48:51], v{V_L16}, s[28:31], s7 offen sc1", "h3")
        epi.append(st_)
    stamp(k)
    while epi: epi.pop(0)()
    k(f"""
    s_add_u32 s58, s58, 4096
    s_add_u32 s59, s59, 4096
    s_waitcnt vmcnt(0)
    s_barrier
    """)
    stamp(k)
    only_wave(k, 0, lambda: sync_signal(k, VS, 59, 6))
    k(f"s_branch {LG4}\n{LI}:")
    sv = k.nstamp
    for kap in range(15): w4dma(kap)
    k(f"""
    s_add_u32 s58, s58, 4096
    s_waitcnt vmcnt(0)
    s_barrier
    {LG4}:
    """)
    k.vm_log = []
    srd(k, 12, P('out'), 0x200000)
    k(f"s_lshl_b32 s3, s25, 6")
    for eta in range(4):
        k(f"s_xor_b32 s7, s3, {32 * eta}\nv_xor_b32 v{40+eta}, s7, v{V_TR}")
    k(f"s_mul_i32 s3, s25, 12288\ns_add_u32 s3, s3, 131072\ns_lshl_b32 s7, s25, 16\ns_lshl_b32 s35, s25, 12\ns_add_u32 s35, s35, 131072")
    for eta in range(4):
        k(f"v_add_u32 v{44+eta}, s3, v{40+eta}\nv_add_u32 v{48+eta}, s7, v{40+eta}\nv_add_u32 v{52+eta}, s35, v{40+eta}")
    def waddr(kap, eta):
        A, B = amap[kap]
        if B == 12288: return (44 + eta, A - 131072)
        if B == 65536: return (48 + eta, A)
        return (52 + eta, A - 131072)
    preread(lambda phi: waddr(phi // 4, phi % 4))
    k(f"""
    s_mul_i32 s20, s27, 56
    s_mul_i32 s3, s25, 28
    s_add_u32 s20, s20, s3
    s_lshl_b32 s20, s20, 10
    s_add_u32 s20, s20, {H3}
    s_add_u32 s3, s49, {MODC + 8192}
    """)
    k.vm(f"buffer_load_dwordx4 v[56:59], v62, s[28:31], s3 offen", "gb")
    k.vm(f"buffer_load_dwordx4 v[60:63], v62, s[28:31], s3 offen offset:64", "gb")
    only_wave(k, 0, lambda: sync_poll(k, VS, 58, 14, 6, s_first=24))
    k("s_waitcnt lgkmcnt(0)\ns_barrier")
    stamp(k)
    def xreg(kap):
        kk = kap % 16
        return 8 + 4 * kk if kk < 8 else 192 + 4 * (kk - 8)
    def xl(kap):
        k(f"s_add_u32 s7, s20, {4096 * (kap // 4)}")
        k.vm(f"buffer_load_dwordx4 {q4(xreg(kap))}, v{V_L16}, s[28:31], s7 offen offset:{1024*(kap%4)} sc1", f"x{kap}")
    for kap in range(4): xl(kap)
    k("s_barrier")
    for kap in range(4, 12): xl(kap)
    ACC = [40, 224, 236, 4]
    D = 6
    def rd(phi):
        kap, eta = divmod(phi, 4)
        if eta == 0 and kap in (15, 19, 23):
            last = {15: 18, 19: 22, 23: 27}[kap]
            k.wait_vm(f"w4_{last}")
            k("s_barrier")
        v, off = waddr(kap, eta)
        b = 64 + 4 * (phi % 8)
        k(f"ds_read_b64_tr_b16 {pr(b)}, v{v} offset:{off}")
        k(f"ds_read_b64_tr_b16 {pr(b+2)}, v{v} offset:{off + 2048}")
    for phi in range(112):
        kap, eta = divmod(phi, 4)
        if eta == 0: k.wait_vm(f"x{kap}")
        if phi >= 32:
            k(f"s_waitcnt lgkmcnt({2 * (min(D, 112 - phi) - 1)})")
            wb = 64 + 4 * (phi % 8)
        else: wb = 64 + 4 * phi
        c = q4(ACC[eta]) if kap else "0"
        k(f"v_mfma_f32_16x16x32_bf16 {q4(ACC[eta])}, {q4(wb)}, {q4(xreg(kap))}, {c}")
        if 32 <= phi + D < 112: rd(phi + D)
        if eta == 1 and kap + 12 < 28: xl(kap + 12)
        if eta == 3 and kap + 15 < 28: w4dma(kap + 15)
        if STAMPS and phi % 32 == 31: stamp(k)
    k(f"""
    v_and_b32 v2, 15, v1
    v_lshlrev_b32 v2, 10, v2
    v_lshrrev_b32 v3, 4, v1
    v_lshl_add_u32 v2, v3, 3, v2
    s_lshl_b32 s3, s27, 14
    s_lshl_b32 s7, s55, 7
    s_add_u32 s3, s3, s7
    s_lshl_b32 s7, s25, 6
    s_add_u32 s3, s3, s7
    s_barrier
    ds_write_b128 v230, {q4(ACC[2])}
    ds_write_b128 v230, {q4(ACC[3])} offset:1024
    """)
    stamp(k)
    for e in range(4): unpack(k, 8 + 2 * e, 9 + 2 * e, V_X1P + e)
    for e in range(4): unpack(k, 16 + 2 * e, 17 + 2 * e, V_X1 + e)
    ap = [ACC[0], ACC[0] + 2, ACC[1], ACC[1] + 2]
    for e in range(4): k(f"v_pk_add_f32 {pr(ap[e])}, {pr(ap[e])}, {pr(8+2*e)}")
    k(f"""
    s_waitcnt lgkmcnt(0)
    s_barrier
    ds_read_b128 v[24:27], v231
    ds_read_b128 v[28:31], v231 offset:1024
    s_waitcnt lgkmcnt(0)
    """)
    for e in range(4): k(f"v_pk_add_f32 {pr(ap[e])}, {pr(ap[e])}, {pr(24+2*e)}")
    for e in range(4): k(f"v_pk_fma_f32 {pr(ap[e])}, {pr(ap[e])}, {pr(56+2*e)}, {pr(16+2*e)}")
    for e in range(4): k(f"v_cvt_pk_bf16_f32 v{8+e}, v{ap[e]}, v{ap[e]+1}")
    k(f"""
    buffer_store_dwordx2 v[8:9], v2, s[12:15], s3 offen
    buffer_store_dwordx2 v[10:11], v2, s[12:15], s3 offen offset:32
    """)
    finish(k, 1)
    return k

if __name__ == "__main__":
    if "stamps" in sys.argv: STAMPS = True
    if "slow" in sys.argv: FORCE_SLOW = True
    if "tailwarm" in sys.argv: TAILWARM = True
    ks = [kernel_1(), kernel_2()]
    ls = [("k1_kernel", 256, 512, K1_LDS), ("k2_kernel", 256, 512, K2_LDS)]
    open(sys.argv[1], "w").write(build(ls, ks))
```

```python
from asmlib import *
import gen2
name = "p_kernel"
k = gen2.KK(name, vgpr=128, sgpr=64)
k(f"""
s_cmp_ge_u32 s2, 256
s_cbranch_scc1 {name}_end
s_load_dwordx2 s[4:5], s[0:1], 72
s_load_dwordx2 s[16:17], s[0:1], 112
v_and_b32 v1, 63, v0
v_lshrrev_b32 v2, 6, v0
v_mov_b32 v50, 0
v_readfirstlane_b32 s6, v2
s_waitcnt lgkmcnt(0)
s_mov_b32 s8, s4
s_mov_b32 s9, s5
s_mov_b32 s10, 0x1c0000
s_mov_b32 s11, 0x20000
s_lshl_b32 s23, s6, 10
""")
idx = 0
def timing(setup, stride_w, stride_i, dma, mods=""):
    global idx
    setup()
    k(f"s_mul_i32 s12, s6, {stride_w}")
    for rep in range(2):
        k("s_waitcnt vmcnt(0) lgkmcnt(0)\ns_barrier\ns_memtime s[20:21]\ns_waitcnt lgkmcnt(0)")
        for i in range(16):
            k(f"s_add_u32 s3, s12, {stride_i*i}")
            if dma: k(f"s_add_u32 m0, s23, {8192*(i%8)}\nbuffer_load_dwordx4 v3, s[8:11], s3 offen {mods} lds")
            else: k(f"buffer_load_dwordx4 v[{64+4*i}:{67+4*i}], v3, s[8:11], s3 offen {mods}")
        k(f"""
        s_waitcnt vmcnt(0)
        s_barrier
        s_memtime s[22:23]
        s_waitcnt lgkmcnt(0)
        s_sub_u32 s22, s22, s20
        v_writelane_b32 v50, s22, {idx}
        s_lshl_b32 s23, s6, 10
        """)
    idx += 1
lin = lambda: k("v_lshlrev_b32 v3, 4, v1")
lin2 = lambda: k("v_lshlrev_b32 v3, 4, v1\nv_add_u32 v3, 2, v3")
lin4 = lambda: k("v_lshlrev_b32 v3, 4, v1\nv_add_u32 v3, 4, v3")
qpat = lambda: k("v_and_b32 v4, 3, v1\nv_lshrrev_b32 v5, 2, v1\nv_lshlrev_b32 v3, 10, v4\nv_lshl_add_u32 v3, v5, 4, v3")
qpat2 = lambda: k("v_lshrrev_b32 v4, 4, v1\nv_and_b32 v5, 15, v1\nv_lshlrev_b32 v3, 10, v4\nv_lshl_add_u32 v3, v5, 4, v3")
def y2pat(off, rs=80):
    return lambda: k(f"v_lshrrev_b32 v4, 2, v1\nv_mul_u32_u24 v3, {rs}, v4\nv_lshrrev_b32 v5, 5, v1\nv_xor_b32 v5, v5, v1\nv_and_b32 v5, 3, v5\nv_lshl_add_u32 v3, v5, 4, v3\nv_add_u32 v3, {off}, v3")
w64 = lambda: gen2.w64_dma_lane(k, 3, 1024, 4)
timing(lin, 16384, 1024, 0)
timing(lin, 16384, 1024, 1)
timing(lin2, 16384, 1024, 1)
timing(lin4, 16384, 1024, 1)
timing(qpat, 16384, 4096+256, 0)
timing(qpat2, 16384, 4096+256, 0)
timing(y2pat(6), 20480, 1280, 1)
timing(y2pat(4), 20480, 1280, 1)
timing(y2pat(0), 20480, 1280, 1)
timing(w64, 8192, 65536, 1)
timing(lin, 16384, 1024, 0, "sc1")
timing(lin, 16384, 1024, 1, "sc1")
timing(y2pat(0, 64), 16384, 1024, 1)
k(f"""
s_cmp_lg_u32 s2, 0
s_cbranch_scc1 {name}_end
v_cmp_gt_u32 vcc, 64, v0
s_and_saveexec_b64 s[30:31], vcc
s_cbranch_execz {name}_end
v_lshlrev_b32 v2, 2, v0
global_store_dword v2, v50, s[16:17]
{name}_end:
s_endpgm
""")
open("mb12.s", "w").write(build([(name, 256, 512, 65536)], [k]))
```

```python
import sys, struct
from asmlib import *

KVT = 0x000000; KVT_SZ = 0x200000
YRS = 88; YBS = 512 * YRS
Y2B = 0x200000; Y2B_SZ = 64 * YBS
MODC = 0x4E0000
QST = 0x4E4000; QST_SZ = 16384
FLAGS = 0x4F0000
HS = 0x500000
ST2 = 0x4E8000
X1 = 0x900000
X1P = 0xB00000
STAT = 0xD00000
H3 = 0xE00000
WS_END = 0x1500000
DBGWS = 0x1800000
STAMPS = False
FORCE_SLOW = False
TAILWARM = False
CODEPF = True

def P(n): return 64 + ARG[n] // 4
LOG2E = 1.4426950408889634
def f2u(x): return struct.unpack('<I', struct.pack('<f', x))[0]
def hx(x): return "0x%08x" % f2u(x)
def pr(r): return f"v[{r}:{r+1}]"
def q4(r): return f"v[{r}:{r+3}]"
ONES = 0x3f803f80
GC1 = -2.0 * LOG2E * 0.7978845608028654
GC2 = GC1 * 0.044715
OOB = 0x80000000

class KK(K):
    def __init__(self, *a, **kw):
        super().__init__(*a, **kw)
        self.vm_log = []
        self.bgq = []
        self.nstamp = 0
    def vm(self, text, tag="x", maybe=False):
        self(text)
        if not maybe: self.vm_log.append(tag)
    def wait_vm(self, *tags, extra=""):
        last = -1
        for i, t in enumerate(self.vm_log):
            if t in tags: last = i
        assert last >= 0, tags
        n = len(self.vm_log) - 1 - last
        assert n <= 63
        self(f"s_waitcnt vmcnt({n}) {extra}")
    def bg(self, items): self.bgq += items
    def tick(self, n=1):
        for _ in range(n):
            if self.bgq: self.bgq.pop(0)()
    def flush(self):
        while self.bgq: self.tick()

def srd(k, d, ptr, size, off=0):
    if off: k(f"s_add_u32 s{d}, s{ptr}, {off}\ns_addc_u32 s{d+1}, s{ptr+1}, 0")
    else: k(f"s_mov_b32 s{d}, s{ptr}\ns_mov_b32 s{d+1}, s{ptr+1}")
    k(f"s_mov_b32 s{d+2}, {size}\ns_mov_b32 s{d+3}, 0x20000")
def srd_s(k, d, ptr, size, soff):
    k(f"s_add_u32 s{d}, s{ptr}, s{soff}\ns_addc_u32 s{d+1}, s{ptr+1}, 0")
    k(f"s_mov_b32 s{d+2}, {size}\ns_mov_b32 s{d+3}, 0x20000")

def stamp(k, idx=None):
    if not STAMPS: return
    if idx is None: idx = k.nstamp
    k.nstamp = idx + 1
    k(f"""
    s_memtime s[98:99]
    s_waitcnt lgkmcnt(0)
    s_sub_u32 s98, s98, s96
    v_writelane_b32 v254, s98, {idx}
    """)
def stamp_out(k, kid):
    if not STAMPS: return
    stamp(k)
    k(f"""
    s_lshl_b32 s98, s2, 3
    s_add_u32 s98, s98, s6
    s_lshl_b32 s98, s98, 8
    s_add_u32 s98, s98, {DBGWS + kid * 0x80000}
    v_and_b32 v255, 63, v0
    v_lshlrev_b32 v255, 2, v255
    v_add_u32 v255, s98, v255
    global_store_dword v255, v254, s[{P('ws')}:{P('ws')+1}]
    """)

def entry(k):
    if STAMPS:
        k.vgpr = 256
        k("s_memtime s[96:97]\nv_mov_b32 v254, 0")
    k(f"""
    s_cmp_ge_u32 s2, 256
    s_cbranch_scc1 {k.name}_end
    s_load_dwordx16 s[64:79], s[0:1], 0
    s_load_dwordx16 s[80:95], s[0:1], 64
    v_lshrrev_b32 v1, 6, v0
    s_and_b32 s4, s2, 7
    s_lshr_b32 s5, s2, 3
    v_readfirstlane_b32 s6, v1
    v_and_b32 v1, 63, v0
    """)
def finish(k, kid=0):
    stamp_out(k, kid)
    k(f"{k.name}_end:\ns_endpgm")

def unpack(k, dlo, dhi, src):
    k(f"v_lshlrev_b32 v{dlo}, 16, v{src}\nv_and_b32 v{dhi}, 0xffff0000, v{src}")

SPIN_MAX = 2000000
def sync_init(k, VS):
    k(f"""
    v_and_b32 v{VS+1}, 31, v1
    s_lshl_b32 s3, s4, 5
    v_add_u32 v{VS+1}, s3, v{VS+1}
    s_add_u32 s3, s3, s5
    v_mov_b32 v{VS+5}, s3
    s_getreg_b32 s3, hwreg(HW_REG_XCC_ID, 0, 4)
    s_or_b32 s3, s3, 0x80
    v_mov_b32 v{VS}, s3
    s_mov_b32 s45, 0
    """)
def sync_publish(k, VS):
    k(f"""
    s_mov_b64 s[46:47], exec
    s_mov_b64 exec, 1
    buffer_store_byte v{VS}, v{VS+5}, s[40:43], 0 offen sc1
    s_mov_b64 exec, s[46:47]
    """)
def sync_table_issue(k, VS):
    k(f"buffer_load_ubyte v{VS+2}, v{VS+1}, s[40:43], 0 offen sc1")
def sync_table_check(k, VS):
    L = k.label("tbl"); D = k.label("tbld")
    k(f"""
    {L}:
    v_cmp_gt_u32 vcc, 0x80, v{VS+2}
    s_cbranch_vccz {D}
    s_add_u32 s45, s45, 1
    s_cmp_gt_u32 s45, {SPIN_MAX}
    s_cbranch_scc1 {D}
    buffer_load_ubyte v{VS+2}, v{VS+1}, s[40:43], 0 offen sc1
    s_waitcnt vmcnt(0)
    s_branch {L}
    {D}:
    v_and_b32 v{VS+2}, 0x8f, v{VS+2}
    v_cmp_ne_u32 vcc, v{VS}, v{VS+2}
    s_cmp_lg_u64 vcc, 0
    s_cselect_b32 s44, 1, 0
    """)
    if FORCE_SLOW: k("s_mov_b32 s44, 1")
def sync_signal(k, VS, s_off, bit):
    L = k.label("sgs"); D = k.label("sgd")
    k(f"""
    v_mov_b32 v{VS+3}, 1
    v_mov_b32 v{VS+4}, s{s_off}
    v_or_b32 v{VS}, {1 << bit}, v{VS}
    s_mov_b64 s[46:47], exec
    s_mov_b64 exec, 1
    s_cmp_lg_u32 s44, 0
    s_cbranch_scc1 {L}
    buffer_store_dword v{VS+3}, v{VS+4}, s[28:31], 0 offen
    s_branch {D}
    {L}:
    buffer_store_byte v{VS}, v{VS+5}, s[40:43], 0 offen sc1
    {D}:
    s_mov_b64 exec, s[46:47]
    """)
def sync_poll(k, VS, s_line, nflags, bit, s_first=None):
    L = k.label("pl"); D = k.label("pld"); E = k.label("ple"); S = k.label("pls"); S2 = k.label("plt")
    k(f"""
    v_min_u32 v{VS+4}, {nflags - 1}, v1
    s_cmp_lg_u32 s44, 0
    s_cbranch_scc1 {S}
    v_lshlrev_b32 v{VS+4}, 2, v{VS+4}
    {L}:
    buffer_load_dword v{VS+3}, v{VS+4}, s[28:31], s{s_line} offen sc1
    s_waitcnt vmcnt(0)
    v_cmp_ne_u32 vcc, 1, v{VS+3}
    s_cbranch_vccz {E}
    s_add_u32 s45, s45, 1
    s_cmp_gt_u32 s45, {SPIN_MAX}
    s_cbranch_scc0 {L}
    s_branch {E}
    {S}:
    s_lshl_b32 s3, s4, 5
    """)
    if s_first is not None: k(f"s_add_u32 s3, s3, s{s_first}")
    k(f"""
    {S2}:
    buffer_load_ubyte v{VS+3}, v{VS+4}, s[40:43], s3 offen sc1
    s_waitcnt vmcnt(0)
    v_and_b32 v{VS+3}, {1 << bit}, v{VS+3}
    v_cmp_eq_u32 vcc, 0, v{VS+3}
    s_cbranch_vccz {D}
    s_add_u32 s45, s45, 1
    s_cmp_gt_u32 s45, {SPIN_MAX}
    s_cbranch_scc0 {S2}
    {D}:
    {E}:
    """)
def only_wave(k, w, fn):
    L = k.label("ow")
    k(f"s_cmp_lg_u32 s6, {w}\ns_cbranch_scc1 {L}")
    fn()
    k(f"{L}:")

def stats_finish(k, S, out, inv_n=1.0 / 512):
    k(f"""
    v_mul_f32 v{S}, {hx(inv_n)}, v{S}
    v_mul_f32 v{S+1}, {hx(inv_n)}, v{S+1}
    v_fma_f32 v{S+1}, -v{S}, v{S}, v{S+1}
    v_max_f32 v{S+1}, 0, v{S+1}
    v_add_f32 v{S+1}, {hx(1e-5)}, v{S+1}
    v_rsq_f32 v{out}, v{S+1}
    v_mul_f32_e64 v{out+1}, -v{S}, v{out}
    """)
def allreduce(k, S, rots):
    k(f"""
    v_permlane32_swap_b32 v{S}, v{S+1}
    v_add_f32 v{S}, v{S}, v{S+1}
    v_mov_b32 v{S+1}, v{S}
    v_permlane16_swap_b32 v{S}, v{S+1}
    v_add_f32 v{S}, v{S}, v{S+1}
    """)
    for r in rots: k(f"v_add_f32_dpp v{S}, v{S}, v{S} row_ror:{r} row_mask:0xf bank_mask:0xf")
    k(f"v_mov_b32 v{S+1}, v{S}\nv_permlane32_swap_b32 v{S}, v{S+1}")
def dot_stats(k, S, regs, first, tick=0):
    for n, r in enumerate(regs):
        c0 = "0" if (first and n == 0) else f"v{S}"
        c1 = "0" if (first and n == 0) else f"v{S+1}"
        k(f"v_dot2_f32_bf16 v{S}, v{r}, s51, {c0}")
        k(f"v_dot2_f32_bf16 v{S+1}, v{r}, v{r}, {c1}")
        if tick and n % tick == tick - 1: k.tick()

TT = 0
MP = 9216
UR = 25600; UR_CH = 4608
KC = 34816; KC_CS = 4160; KC_CH = 8 * 4160
KT = KC + 2 * KC_CH
VT = KT + 9216
K1_LDS = VT + 8192
RED1 = 0

def conv_body(k, tg, dh):
    tiles = [[0, 3, 4, 7], [1, 2, 5, 6]][tg]
    tmax = tiles[-1]
    def Areg(s, ip): return 32 + 64 * s + 4 * ip
    def Breg(s, e): return 64 + 64 * s + 4 * e
    def order():
        mf = [(ip, ti, t) for ip in range(tmax + 1) for ti, t in enumerate(tiles) if ip <= t]
        seen = [];
        for ip, ti, t in mf:
            for x in (('A', ip), ('B', t - ip)):
                if x not in seen: seen.append(x)
        return mf, seen
    mf, seen = order()
    def loads(s, dl):
        d = 4 * dh + dl
        L = []
        for kind, x in seen:
            if kind == 'A': L.append(f"ds_read_b128 {q4(Areg(s, x))}, v2 offset:{64*d + 512*x}")
            else: L.append(f"ds_read_b128 {q4(Breg(s, x))}, v3 offset:{64*d + 512*(7-x)}")
        return L
    nl = len(seen)
    first = loads(0, 0)
    for l in first[:15]: k(l)
    pending_first = first[15:]
    for dl in range(4):
        s = dl & 1
        nxt = pending_first + (loads(1 - s, dl + 1) if dl < 3 else [])
        npf = len(pending_first)
        issued_cur = nl - npf
        pending_first = []
        ni = 0
        for n, (ip, ti, t) in enumerate(mf):
            needi = max(seen.index(('A', ip)), seen.index(('B', t - ip)))
            tot_issued = issued_cur + ni
            assert needi < tot_issued
            allow = tot_issued - 1 - needi
            k(f"s_waitcnt lgkmcnt({min(allow, 15)})")
            c = q4(8 + 4 * ti) if (dl or ip) else "0"
            k(f"v_mfma_f32_16x16x32_bf16 {q4(8+4*ti)}, {q4(Areg(s, ip))}, {q4(Breg(s, t - ip))}, {c}")
            if ni < len(nxt) and allow < 15:
                k(nxt[ni]); ni += 1
        while ni < len(nxt):
            k("s_waitcnt lgkmcnt(14)"); k(nxt[ni]); ni += 1
    stamp(k, 8)
    keep = [2 * dh, 2 * dh + 1]; send = [2 * (1 - dh), 2 * (1 - dh) + 1]
    for n, ti in enumerate(keep):
        k(f"ds_read_b64 {pr(32+2*n)}, v6 offset:{512*(7-tiles[ti])}")
    k(f"""
    ds_write_b128 v4, {q4(8+4*send[0])} offset:{RED1}
    ds_write_b128 v4, {q4(8+4*send[1])} offset:{RED1 + 1024}
    s_waitcnt lgkmcnt(0)
    s_barrier
    ds_read_b128 v[40:43], v5 offset:{RED1}
    ds_read_b128 v[44:47], v5 offset:{RED1 + 1024}
    """)
    for n, ti in enumerate(keep):
        a = 8 + 4 * ti; b = 48 + 4 * n
        unpack(k, b + 3, b + 2, 32 + 2 * n)
        unpack(k, b + 1, b + 0, 33 + 2 * n)
        k(f"v_pk_fma_f32 {pr(a)}, {pr(b)}, {pr(24)}, {pr(a)} op_sel_hi:[1,0,1]")
        k(f"v_pk_fma_f32 {pr(a+2)}, {pr(b+2)}, {pr(24)}, {pr(a+2)} op_sel_hi:[1,0,1]")
        k(f"v_add_u32 v{60+2*n}, {tiles[ti] * 8 * YBS}, v26")
        k(f"v_add_u32 v{61+2*n}, {tiles[ti] * 8 * YBS}, v27")
    k("s_waitcnt lgkmcnt(0)")
    for n, ti in enumerate(keep):
        a = 8 + 4 * ti
        k(f"""
        v_pk_add_f32 {pr(a)}, {pr(a)}, {pr(40+4*n)}
        v_pk_add_f32 {pr(a+2)}, {pr(a+2)}, {pr(42+4*n)}
        v_cvt_pk_bf16_f32 v{56+2*n}, v{a}, v{a+1}
        v_cvt_pk_bf16_f32 v{57+2*n}, v{a+2}, v{a+3}
        buffer_store_dwordx2 {pr(56+2*n)}, v{60+2*n}, s[12:15], 0 offen
        buffer_store_dwordx2 {pr(56+2*n)}, v{61+2*n}, s[12:15], 0 offen
        """)

def kernel_1():
    k = KK("k1_kernel", vgpr=208, sgpr=100)
    VS = 168
    XS = MP
    entry(k)
    k(f"""
    v_lshrrev_b32 v2, 3, v1
    v_lshlrev_b32 v2, 10, v2
    v_and_b32 v3, 7, v1
    v_lshl_add_u32 v2, v3, 4, v2         ; (l>>3)*1024 + 16 (l&7)
    s_lshl_b32 s3, s5, 16
    s_lshl_b32 s7, s4, 7
    s_add_u32 s20, s3, s7
    v_add_u32 v8, s20, v2
    v_add_u32 v8, 0xffffe000, v8
    v_cmp_gt_u32 vcc, 40, v1
    v_mov_b32 v3, {OOB}
    v_cndmask_b32 v8, v8, v3, vcc
    s_mov_b32 s50, s20
    s_lshl_b32 s3, s6, 13
    s_add_u32 s20, s20, s3
    s_lshl_b32 s23, s6, 10
    v_and_b32 v4, 31, v0                 ; cp
    v_lshrrev_b32 v5, 5, v0              ; rg
    s_lshl_b32 s3, s4, 9
    v_lshl_add_u32 v6, v4, 4, s3
    s_lshl_b32 s3, s4, 6
    s_lshl_b32 s7, s5, 1
    s_add_u32 s36, s3, s7                ; d0
    v_lshlrev_b32 v9, 4, v1              ; lane*16
    s_mov_b32 s51, {ONES}
    s_lshl_b32 s26, s4, 7
    s_add_u32 s26, s26, {FLAGS}
    s_lshl_b32 s3, s5, 2
    s_add_u32 s27, s26, s3
    """)
    sync_init(k, VS)
    k(f"""
    v_mov_b32 v{VS+3}, 0
    v_mov_b32 v{VS+4}, s27
    s_waitcnt lgkmcnt(0)
    """)
    srd(k, 28, P('ws'), WS_END)
    LS0 = k.label("s0"); LSJ = k.label("sj")
    k(f"s_cmp_eq_u32 s6, 0\ns_cbranch_scc1 {LS0}")
    srd(k, 8, P('A_k'), 0x200000)
    srd(k, 12, P('A_v'), 0x200000)
    k(f"s_add_u32 m0, s23, {KT + 1024}")
    k("buffer_load_dwordx4 v2, s[8:11], s20 offen lds")
    k(f"s_add_u32 m0, s23, {VT}")
    k("buffer_load_dwordx4 v2, s[12:15], s20 offen lds")
    only_wave(k, 1, lambda: k(f"s_mov_b32 m0, {KT}\nbuffer_load_dwordx4 v8, s[8:11], 0 offen lds"))
    only_wave(k, 2, lambda: k(f"s_mov_b32 m0, {KT + 1024}\nbuffer_load_dwordx4 v2, s[8:11], s50 offen lds"))
    only_wave(k, 3, lambda: k(f"s_mov_b32 m0, {VT}\nbuffer_load_dwordx4 v2, s[12:15], s50 offen lds"))
    k(f"s_branch {LSJ}\n{LS0}:")
    k(f"""
    s_mov_b64 s[46:47], exec
    s_mov_b64 exec, 1
    buffer_store_dword v{VS+3}, v{VS+4}, s[28:31], 0 offen
    s_mov_b64 exec, s[46:47]
    """)
    k("s_waitcnt vmcnt(0)")
    k(f"{LSJ}:")
    srd(k, 40, P('dbg'), 256)
    srd(k, 16, P('A_shift_k'), 4096)
    k.vm("buffer_load_dwordx4 v[24:27], v6, s[16:19], 0 offen", "shk")
    k(f"""
    s_lshl_b32 s3, s36, 1
    s_load_dword s37, s[{P('A_ssm_D')}:{P('A_ssm_D')+1}], s3
    s_lshl_b32 s3, s36, 12
    """)
    srd_s(k, 32, P('A_ssm_k'), 8192, 3)
    srd(k, 16, P('c'), 1024)
    k(f"""
    s_lshr_b32 s38, s6, 2                ; c2
    s_mul_i32 s3, s38, {KC_CH - 4096}
    s_add_u32 s3, s3, s23
    s_add_u32 m0, s3, {KC + 7 * KC_CS + 16}
    v_lshlrev_b32 v44, 1, v0
    s_barrier
    """)
    only_wave(k, 0, lambda: sync_publish(k, VS))
    def codepf():
        k(f"""
        s_getpc_b64 s[46:47]
        k1_pc:
        s_sub_u32 s46, s46, k1_pc-k1_kernel
        s_subb_u32 s47, s47, 0
        v_and_b32 v46, 15, v1
        s_lshl_b32 s3, s5, 4
        v_add_u32 v46, s3, v46
        v_lshlrev_b32 v46, 7, v46
        v_min_u32 v46, code_end-k1_kernel-4, v46
        global_load_dword v47, v46, s[46:47]
        """)
    if CODEPF: only_wave(k, 4, codepf)
    k.vm("buffer_load_dwordx4 v9, s[32:35], s23 offen lds", "kc0")
    k.vm("buffer_load_ushort v45, v44, s[16:19], 0 offen", "c")
    stamp(k)
    k(f"""
    v_lshrrev_b32 v37, 3, v0
    v_and_b32 v38, 7, v0
    v_mul_u32_u24 v39, 144, v37
    v_lshl_add_u32 v39, v38, 4, v39
    v_mul_u32_u24 v166, 6144, v37
    v_lshl_add_u32 v166, v38, 4, v166
    v_lshlrev_b32 v165, 2, v37
    v_lshlrev_b32 v37, 12, v37
    v_lshl_add_u32 v37, v38, 4, v37
    s_lshl_b32 s48, s4, 18
    s_lshl_b32 s7, s5, 7
    s_sub_u32 s48, s48, s7
    s_add_u32 s48, s48, {KVT + 3968}
    s_lshl_b32 s49, s4, 5
    s_add_u32 s49, s49, s5
    s_lshl_b32 s39, s49, 3
    s_add_u32 s39, s39, s6               ; q token = 256 j + 8 i + w
    s_mul_i32 s49, s4, 6
    s_add_u32 s49, s49, s5
    v_mul_u32_u24 v36, 288, v4
    v_lshlrev_b32 v38, 3, v5
    v_sub_u32 v36, v36, v38
    v_add_u32 v36, {TT + 120}, v36
    v_lshlrev_b32 v2, 9, v5
    v_lshl_add_u32 v2, v4, 2, v2
    v_add_u32 v3, {VT}, v2
    v_add_u32 v2, {KT + 5 * 128}, v2
    v_mov_b32 v116, 0
    v_mov_b32 v117, 0
    v_mov_b32 v118, 0
    v_mov_b32 v119, 0
    v_lshrrev_b32 v112, 5, v1
    v_mul_u32_u24 v112, {UR_CH}, v112
    v_and_b32 v113, 31, v1
    v_lshl_add_u32 v112, v113, 4, v112
    v_and_b32 v113, 15, v1
    v_mul_u32_u24 v113, {KC_CS}, v113
    v_lshlrev_b32 v167, 7, v1
    """)
    srd(k, 8, P('A_q'), 0x200000)
    srd(k, 52, P('w_mod'), 512 * 6144)
    srd(k, 56, P('B_w1'), 0x80000)
    srd(k, 60, P('B_w2'), 0x80000)
    only_wave(k, 1, lambda: k(f"ds_write_b128 v112, v[116:119] offset:{UR + 4096}"))
    only_wave(k, 2, lambda: k(f"ds_write_b128 v113, v[116:119] offset:{KC}"))
    k.wait_vm("shk")
    k("s_barrier")
    stamp(k)
    k(f"""
    ds_read2_b32 v[10:11], v2 offset0:0 offset1:32
    ds_read2_b32 v[12:13], v2 offset0:64 offset1:96
    ds_read2_b32 v[14:15], v2 offset0:128 offset1:160
    ds_read_b32 v16, v2 offset:768
    ds_read2_b32 v[18:19], v3 offset0:0 offset1:32
    ds_read2_b32 v[20:21], v3 offset0:64 offset1:96
    """)
    def tbl():
        sync_table_issue(k, VS)
        k(f"v_mov_b32 v{VS+4}, s26\nbuffer_load_dword v{VS+3}, v{VS+4}, s[28:31], 0 offen sc1")
    only_wave(k, 0, tbl)
    unpack(k, 62, 64, 24); unpack(k, 66, 68, 25); unpack(k, 63, 65, 26); unpack(k, 67, 69, 27)
    k("s_waitcnt lgkmcnt(0)")
    for r in range(7): unpack(k, 110 + 2 * r, 111 + 2 * r, 10 + r)
    for r in range(4): k(f"v_pk_mul_f32 {pr(70+2*r)}, {pr(110+2*(r+3))}, {pr(62)}")
    for tau in range(1, 4):
        for r in range(4):
            k(f"v_pk_fma_f32 {pr(70+2*r)}, {pr(110+2*(r+3-tau))}, {pr(62+2*tau)}, {pr(70+2*r)}")
    for r in range(4): unpack(k, 54 + 2 * r, 55 + 2 * r, 18 + r)
    for r in range(4): k(f"v_pk_mul_f32 {pr(70+2*r)}, {pr(70+2*r)}, {pr(54+2*r)}")
    k(f"""
    v_cvt_pk_bf16_f32 v40, v76, v74
    v_cvt_pk_bf16_f32 v41, v72, v70
    v_cvt_pk_bf16_f32 v42, v77, v75
    v_cvt_pk_bf16_f32 v43, v73, v71
    ds_write_b64 v36, v[40:41]
    ds_write_b64 v36, v[42:43] offset:144
    s_waitcnt lgkmcnt(0)
    s_barrier
    ds_read_b128 v[40:43], v39 offset:{TT}
    s_waitcnt lgkmcnt(0)
    buffer_store_dwordx4 v[40:43], v37, s[28:31], s48 offen sc1
    """)
    stamp(k)
    srd(k, 12, P('ws'), Y2B_SZ, Y2B)
    k(f"""
    v_lshrrev_b32 v3, 8, v0
    v_mul_u32_u24 v3, {UR_CH}, v3
    v_and_b32 v4, 255, v0
    v_lshl_add_u32 v3, v4, 4, v3
    v_add_u32 v12, {UR}, v3
    v_and_b32 v28, 15, v1
    v_lshrrev_b32 v29, 4, v1
    v_and_b32 v2, 7, v28
    v_mul_u32_u24 v2, {KC_CS}, v2
    v_lshrrev_b32 v3, 3, v28
    v_add_u32 v3, v3, v29
    v_lshl_add_u32 v2, v3, 4, v2
    s_mul_i32 s3, s38, {KC_CH}
    s_add_u32 s3, s3, {KC}
    v_add_u32 v2, s3, v2                 ; A addr
    s_mul_i32 s3, s38, {UR_CH}
    s_add_u32 s3, s3, {UR + 480}
    v_lshlrev_b32 v3, 4, v29
    v_lshlrev_b32 v4, 5, v28
    v_sub_u32 v3, v3, v4
    v_add_u32 v3, s3, v3                 ; B addr
    s_add_u32 s3, s3, {4088 - 3584 - 480}
    v_lshlrev_b32 v6, 3, v29
    v_add_u32 v6, v6, v4
    v_sub_u32 v6, s3, v6
    s_lshl_b32 s3, s6, 11
    v_lshl_add_u32 v4, v1, 4, s3
    s_xor_b32 s3, s3, 4096
    v_lshl_add_u32 v5, v1, 4, s3
    v_add_u32 v4, {KT}, v4
    v_add_u32 v5, {KT}, v5
    v_lshrrev_b32 v26, 1, v28
    v_mul_u32_u24 v26, {YBS}, v26
    v_and_b32 v27, 1, v28
    v_lshlrev_b32 v27, 2, v27
    v_add_u32 v27, v27, v29
    v_lshl_add_u32 v26, v27, 3, v26
    s_add_u32 s3, s36, s38
    s_mul_i32 s3, s3, {YRS}
    s_add_u32 s3, s3, 8
    v_add_u32 v26, s3, v26
    v_add_u32 v30, {YBS - 64}, v26
    v_add_u32 v31, {(-YBS + 64) & 0xffffffff}, v26
    v_cmp_eq_u32 vcc, 7, v27
    v_cmp_eq_u32 s[46:47], 0, v27
    v_mov_b32 v27, {OOB}
    v_cndmask_b32 v27, v27, v30, vcc
    v_cndmask_b32 v27, v27, v31, s[46:47]
    s_lshl_b32 s3, s37, 16
    s_and_b32 s7, s37, 0xffff0000
    s_cmp_eq_u32 s38, 0
    s_cselect_b32 s3, s3, s7
    v_mov_b32 v24, s3                    ; D
    v_lshlrev_b32 v13, 4, v0
    s_lshl_b32 s20, s36, 12
    s_add_u32 s20, s20, {KVT}
    v_add_u32 v14, {KC + 7 * KC_CS}, v9
    v_add_u32 v15, {KC + 7 * KC_CS + KC_CH}, v9
    s_waitcnt vmcnt(0) lgkmcnt(0)
    s_barrier
    """)
    stamp(k)
    k.vm_log = []
    LJ = k.label("cj")
    labs = [k.label(f"cp{w}_") for w in range(8)]
    for w in range(1, 8):
        k(f"s_cmp_eq_u32 s6, {w}\ns_cbranch_scc1 {labs[w]}")
    sync_table_check(k, VS)
    sync_signal(k, VS, 27, 4)
    stamp(k)
    sync_poll(k, VS, 26, 32, 4)
    k(f"s_branch {LJ}")
    for w in range(1, 8):
        a = w - 1; sft = 7 - a
        k(f"{labs[w]}:")
        k(f"v_add_u32 v16, {KC + a * KC_CS + 16}, v9\nv_add_u32 v17, {KC + a * KC_CS + 16 + KC_CH}, v9")
        for half in range(2):
            for q in range(4):
                b = 48 + 8 * (4 * half + q)
                k(f"ds_read_b128 {q4(b)}, v{14+half} offset:{1024*q}")
                k(f"ds_read_b128 {q4(b+4)}, v{14+half} offset:{1024*q + 16}")
                if half == 1 and q == 2: k("s_waitcnt lgkmcnt(8)")
        for n in range(8):
            half, q = divmod(n, 4)
            b = 48 + 8 * n
            if n == 0: k("s_waitcnt lgkmcnt(8)")
            if n == 4: k("s_waitcnt lgkmcnt(4)")
            off = 16 - 2 * sft
            x = off // 4
            if off % 4 == 0:
                if (b + x) % 2 == 0:
                    k(f"ds_write_b128 v{16+half}, {q4(b+x)} offset:{1024*q}")
                else:
                    for i in range(4): k(f"v_mov_b32 v{116+4*(n%2)+i}, v{b+x+i}")
                    k(f"ds_write_b128 v{16+half}, {q4(116+4*(n%2))} offset:{1024*q}")
            else:
                for i in range(4): k(f"v_alignbit_b32 v{116+4*(n%2)+i}, v{b+x+i+1}, v{b+x+i}, 16")
                k(f"ds_write_b128 v{16+half}, {q4(116+4*(n%2))} offset:{1024*q}")
        if w < 7: k(f"s_branch {LJ}")
    k(f"{LJ}:")
    stamp(k, 5)
    k("s_barrier")
    stamp(k)
    k("buffer_load_dwordx4 v[20:23], v13, s[28:31], s20 offen sc1")
    k(f"""
    v_lshlrev_b32 v45, 16, v45
    v_mul_f32 v46, {hx(-LOG2E)}, v45
    v_exp_f32 v46, v46
    v_add_f32 v46, 1.0, v46
    v_rcp_f32 v46, v46
    v_mul_f32 v45, v45, v46
    v_cvt_pk_bf16_f32 v45, v45, v45
    v_lshlrev_b32 v45, 16, v45
    v_lshlrev_b32 v44, 2, v0
    ds_write_b32 v44, v45 offset:{XS}
    s_lshl_b32 s22, s39, 10
    s_barrier
    buffer_load_dwordx4 v[{VS}:{VS+3}], v9, s[8:11], s22 offen
    """)
    LM = k.label("mw"); LN = k.label("mn")
    k(f"""
    s_cmp_ge_u32 s5, 6
    s_cbranch_scc1 {LM}
    s_lshl_b32 s21, s49, 7
    """)
    for a in range(8):
        k(f"buffer_load_dwordx4 {q4(176+4*a)}, v166, s[52:55], s21 offen\ns_add_u32 s21, s21, {64*6144}")
    k(f"""
    s_waitcnt vmcnt(9)
    s_branch {LN}
    {LM}:
    s_sub_u32 s3, s5, 6
    s_mul_i32 s3, s3, 5
    s_add_u32 s3, s3, s6
    s_cmp_ge_u32 s6, 5
    s_cselect_b32 s3, 255, s3
    s_lshl_b32 s3, s3, 13
    s_sub_u32 s7, s3, 0x80000
    s_cmp_ge_u32 s3, 0x80000
    s_cselect_b32 s3, {OOB}, s3
    s_cselect_b32 s7, s7, {OOB}
    v_add_u32 v174, s3, v167
    v_add_u32 v175, s7, v167
    buffer_load_dword v174, v174, s[56:59], 0 offen
    buffer_load_dword v175, v175, s[60:63], 0 offen
    s_waitcnt vmcnt(3)
    {LN}:
    ds_write_b128 v12, v[20:23]
    s_waitcnt lgkmcnt(0)
    s_barrier
    """)
    stamp(k)
    labs = [k.label(f"cv{x}_") for x in range(4)]
    Lend = k.label("cvend")
    k(f"""
    s_and_b32 s3, s6, 3
    s_cmp_eq_u32 s3, 1
    s_cbranch_scc1 {labs[1]}
    s_cmp_eq_u32 s3, 2
    s_cbranch_scc1 {labs[2]}
    s_cmp_eq_u32 s3, 3
    s_cbranch_scc1 {labs[3]}
    """)
    for x in range(4):
        if x: k(f"{labs[x]}:\ns_nop 7\ns_nop 7")
        conv_body(k, x & 1, x >> 1)
        if x < 3: k(f"s_branch {Lend}")
    k(f"{Lend}:\ns_nop 7\ns_waitcnt vmcnt(4)")
    stamp(k)
    dot_stats(k, 46, range(VS, VS + 4), True)
    allreduce(k, 46, (1, 2, 4, 8))
    stats_finish(k, 46, 48)
    k(f"""
    s_lshl_b32 s3, s39, 3
    s_add_u32 s3, s3, {QST}
    v_mov_b32 v50, 0
    s_mov_b64 s[46:47], exec
    s_mov_b64 exec, 1
    buffer_store_dwordx2 v[48:49], v50, s[28:31], s3 offen
    s_mov_b64 exec, s[46:47]
    """)
    def zf():
        k(f"""
        s_and_b32 s3, s5, 7
        s_lshl_b32 s3, s3, 2
        s_lshr_b32 s7, s5, 3
        s_lshl_b32 s46, s4, 2
        s_add_u32 s7, s7, s46
        s_lshl_b32 s7, s7, 7
        s_add_u32 s3, s3, s7
        s_add_u32 s3, s3, {FLAGS + 4096}
        v_mov_b32 v51, s3
        s_and_b32 s3, s5, 15
        s_lshl_b32 s3, s3, 2
        s_lshr_b32 s7, s5, 4
        s_lshl_b32 s46, s4, 1
        s_add_u32 s7, s7, s46
        s_lshl_b32 s7, s7, 7
        s_add_u32 s3, s3, s7
        s_add_u32 s3, s3, {FLAGS + 8192}
        v_writelane_b32 v51, s3, 1
        s_add_u32 s3, s3, 4096
        v_writelane_b32 v51, s3, 2
        s_mov_b64 s[46:47], exec
        s_mov_b64 exec, 7
        buffer_store_dword v50, v51, s[28:31], 0 offen
        s_mov_b64 exec, s[46:47]
        """)
    only_wave(k, 1, zf)
    LE = k.label("mend")
    k(f"s_cmp_ge_u32 s5, 6\ns_cbranch_scc1 {LE}")
    for a in range(8): k(f"ds_read_b32 v{64+2*a}, v165 offset:{XS + 256*a}")
    k(f"""
    v_and_b32 v52, 7, v1
    v_lshlrev_b32 v52, 5, v52
    v_lshrrev_b32 v53, 4, v1
    v_lshl_add_u32 v52, v53, 3, v52
    s_lshl_b32 s3, s6, 8
    s_add_u32 s3, s3, {MP + 2048}
    v_add_u32 v52, s3, v52
    s_waitcnt lgkmcnt(0)
    """)
    for a in range(8):
        for e in range(4):
            t = 88 + 2 * ((4 * a + e) % 4)
            unpack(k, t, t + 1, 176 + 4 * a + e)
            if a == 0: k(f"v_pk_mul_f32 {pr(80+2*e)}, {pr(t)}, {pr(64)} op_sel_hi:[1,0]")
            else: k(f"v_pk_fma_f32 {pr(80+2*e)}, {pr(t)}, {pr(64+2*a)}, {pr(80+2*e)} op_sel_hi:[1,0,1]")
    for i in range(4): k(f"v_permlane32_swap_b32 v{80+i}, v{84+i}")
    for i in range(4): k(f"v_add_f32 v{80+i}, v{80+i}, v{84+i}")
    for i in range(2): k(f"v_permlane16_swap_b32 v{80+i}, v{82+i}")
    for i in range(2): k(f"v_add_f32 v{80+i}, v{80+i}, v{82+i}")
    for i in range(2): k(f"v_add_f32_dpp v{80+i}, v{80+i}, v{80+i} row_ror:8 row_mask:0xf bank_mask:0xf")
    k(f"""
    ds_write_b64 v52, v[80:81]
    s_waitcnt lgkmcnt(0)
    s_barrier
    s_cmp_lg_u32 s6, 0
    s_cbranch_scc1 {LE}
    v_lshlrev_b32 v52, 2, v1
    """)
    for w in range(8): k(f"ds_read_b32 v{64+w}, v52 offset:{MP + 2048 + 256*w}")
    k(f"""
    s_lshr_b32 s3, s49, 3                ; vector
    s_cmp_eq_u32 s3, 1
    s_cselect_b32 s7, 1.0, 0
    s_cmp_eq_u32 s3, 4
    s_cselect_b32 s7, 1.0, s7
    s_lshl_b32 s3, s49, 8
    s_add_u32 s3, s3, {MODC}
    s_waitcnt lgkmcnt(0)
    v_add_f32 v64, v64, v65
    v_add_f32 v66, v66, v67
    v_add_f32 v68, v68, v69
    v_add_f32 v70, v70, v71
    v_add_f32 v64, v64, v66
    v_add_f32 v68, v68, v70
    v_add_f32 v64, v64, v68
    v_cvt_pk_bf16_f32 v64, v64, v64
    v_lshlrev_b32 v64, 16, v64
    v_add_f32 v64, s7, v64
    v_cvt_pk_bf16_f32 v64, v64, v64
    v_lshlrev_b32 v64, 16, v64
    buffer_store_dword v64, v52, s[28:31], s3 offen
    {LE}:
    """)
    finish(k, 0)
    return k

YX = 131072; CONSTL = 122880
K2_LDS = 163840

def gelu_items(k, regs, tmp, c1):
    n = len(regs); L = []
    for i, r in enumerate(regs): L.append(f"v_pk_mul_f32 {pr(tmp+2*i)}, {pr(r)}, {pr(r)}")
    for i, r in enumerate(regs): L.append(f"v_pk_fma_f32 {pr(tmp+2*i)}, {pr(tmp+2*i)}, s[52:53], {pr(c1)} op_sel_hi:[1,1,0]")
    for i, r in enumerate(regs): L.append(f"v_pk_mul_f32 {pr(tmp+2*i)}, {pr(tmp+2*i)}, {pr(r)}")
    for i in range(2 * n): L.append(f"v_exp_f32 v{tmp+i}, v{tmp+i}")
    for i, r in enumerate(regs): L.append(f"v_pk_add_f32 {pr(tmp+2*i)}, {pr(tmp+2*i)}, 1.0 op_sel_hi:[1,0]")
    for i in range(2 * n): L.append(f"v_rcp_f32 v{tmp+i}, v{tmp+i}")
    for i, r in enumerate(regs): L.append(f"v_pk_mul_f32 {pr(r)}, {pr(r)}, {pr(tmp+2*i)}")
    return L

def w64_dma_lane(k, dst, rowbytes, t1):
    k(f"""
    v_lshrrev_b32 v{t1}, 3, v1
    v_mul_u32_u24 v{dst}, {rowbytes}, v{t1}
    v_lshrrev_b32 v{t1}, 4, v1
    v_lshlrev_b32 v{t1}, 1, v{t1}
    v_xor_b32 v{t1}, v{t1}, v1
    v_and_b32 v{t1}, 7, v{t1}
    v_lshl_add_u32 v{dst}, v{t1}, 4, v{dst}
    """)
def w64_tr_lane(k, dst, t1, t2):
    k(f"""
    v_lshrrev_b32 v{t1}, 2, v1
    v_lshlrev_b32 v{dst}, 7, v{t1}
    v_and_b32 v{t1}, 6, v{t1}
    v_bfe_u32 v{t2}, v1, 1, 1
    v_add_u32 v{t1}, v{t1}, v{t2}
    v_lshl_add_u32 v{dst}, v{t1}, 4, v{dst}
    v_and_b32 v{t2}, 1, v1
    v_lshl_add_u32 v{dst}, v{t2}, 3, v{dst}
    """)

def kernel_2():
    k = KK("k2_kernel", vgpr=254, sgpr=100)
    VS = 248
    V_L16 = 232; V_D1K = 233; V_D35 = 234; V_TR = 235; V_GC1 = 236
    V_X1 = 240; V_X1P = 244
    YT = 131072 - YBS
    CA = YT - 6144
    bc = "op_sel:[0,0,1] op_sel_hi:[1,0,1]"
    entry(k)
    k(f"""
    s_lshr_b32 s3, s5, 2
    s_lshl_b32 s48, s4, 3
    s_add_u32 s48, s48, s3              ; m
    s_and_b32 s49, s5, 3                ; g
    s_lshr_b32 s3, s49, 1
    s_add_u32 s3, s3, 1
    s_sub_u32 s7, 0, s3
    s_bitcmp1_b32 s49, 0
    s_cselect_b32 s50, s3, s7           ; sh
    s_mov_b32 s51, {ONES}
    s_lshr_b32 s25, s6, 2
    s_and_b32 s26, s6, 3
    s_lshl_b32 s23, s6, 10
    v_lshlrev_b32 v{V_L16}, 4, v1
    s_mul_i32 s20, s48, {YBS}
    s_add_u32 s20, s20, s23
    s_lshl_b32 s21, s48, 5
    s_add_u32 s21, s21, s50
    s_lshl_b32 s3, s6, 2
    s_add_u32 s21, s21, s3
    v_and_b32 v4, 3, v1                 ; t
    v_lshrrev_b32 v5, 2, v1             ; c
    v_subrev_u32 v3, s50, v4
    v_and_b32 v3, 3, v3                 ; tr
    v_add_u32 v6, s21, v3               ; ts
    v_lshlrev_b32 v44, 3, v6
    s_lshl_b32 s22, s21, 10
    s_waitcnt lgkmcnt(0)
    """)
    srd(k, 8, P('ws'), Y2B_SZ, Y2B)
    srd(k, 12, P('A_q'), 0x200000)
    srd(k, 28, P('ws'), WS_END)
    srd(k, 32, P('ws'), QST_SZ, QST)
    for a in range(5):
        k(f"s_add_u32 m0, s23, {YT + 8192 * a}\ns_add_u32 s3, s20, {8192 * a}")
        k.vm(f"buffer_load_dwordx4 v{V_L16}, s[8:11], s3 offen lds", "crit")
    LA = k.label("ya"); LB = k.label("yb")
    k(f"""
    s_cmp_ge_u32 s6, 4
    s_cbranch_scc1 {LA}
    s_add_u32 m0, s23, {YT + 40960}
    s_add_u32 s3, s20, 40960
    buffer_load_dwordx4 v{V_L16}, s[8:11], s3 offen lds
    {LA}:
    s_cmp_lt_u32 s6, 2
    s_cbranch_scc1 {LB}
    s_add_u32 m0, s23, {CA - 2048}
    s_add_u32 s3, s23, {MODC - 2048}
    buffer_load_dwordx4 v{V_L16}, s[28:31], s3 offen lds
    {LB}:
    s_lshl_b32 s24, s6, 12
    """)
    for r in range(4):
        k(f"""
        v_xor_b32 v7, {64 * r}, v{V_L16}
        v_add_u32 v7, s22, v7
        s_add_u32 m0, s24, {YX + 1024 * r}
        s_add_u32 s22, s22, 1024
        """)
        k.vm("buffer_load_dwordx4 v7, s[12:15], 0 offen lds", "crit")
    k.vm("buffer_load_dwordx2 v[42:43], v44, s[32:35], 0 offen", "crit")
    srd(k, 16, P('B_w1'), 0x80000)
    srd(k, 40, P('dbg'), 256)
    sync_init(k, VS)
    k(f"""
    v_lshrrev_b32 v40, 4, v1
    s_and_b32 s3, s6, 2
    s_lshl_b32 s3, s3, 1
    v_or_b32 v41, s3, v40
    v_lshlrev_b32 v41, 1, v41
    v_and_b32 v45, 15, v1
    v_xor_b32 v41, v41, v45
    v_lshlrev_b32 v40, 10, v40
    v_lshl_add_u32 v224, v41, 4, v40
    s_lshl_b32 s22, s6, 12
    s_lshl_b32 s3, s49, 8
    s_add_u32 s22, s22, s3
    s_lshr_b32 s3, s5, 3
    s_lshl_b32 s54, s4, 2
    s_add_u32 s54, s54, s3              ; M2
    s_lshr_b32 s3, s5, 4
    s_lshl_b32 s56, s4, 1
    s_add_u32 s56, s56, s3              ; M3
    s_barrier
    """)
    def pub():
        sync_publish(k, VS)
        k(f"""
        s_lshl_b32 s3, s54, 7
        s_add_u32 s3, s3, {FLAGS + 4096}
        v_mov_b32 v{VS+4}, s3
        s_lshl_b32 s3, s56, 7
        s_add_u32 s3, s3, {FLAGS + 8192}
        v_writelane_b32 v{VS+4}, s3, 1
        s_add_u32 s3, s3, 4096
        v_writelane_b32 v{VS+4}, s3, 2
        buffer_load_dword v{VS+3}, v{VS+4}, s[28:31], 0 offen sc1
        """)
    def w1dma(a):
        k(f"s_add_u32 m0, s23, {8192 * a}\ns_add_u32 s7, s22, {32768 * a}")
        k.vm("buffer_load_dwordx4 v224, s[16:19], s7 offen lds", "w1")
    for a in range(9): w1dma(a)
    stamp(k)
    k(f"""
    v_lshrrev_b32 v44, 4, v1            ; gq
    v_bfe_u32 v45, v1, 2, 2             ; r
    v_and_b32 v46, 3, v1                ; q'
    v_lshlrev_b32 v47, 5, v44
    v_lshl_add_u32 v47, v46, 3, v47
    v_add_u32 v47, v47, v45
    v_mul_u32_u24 v47, {YRS}, v47
    s_and_b32 s3, s49, 1
    s_add_u32 s3, s3, s6
    s_lshl_b32 s3, s3, 3
    s_add_u32 s3, s3, {YT}
    v_add_u32 v47, s3, v47
    v_lshlrev_b32 v48, 5, v5
    v_add_u32 v225, {YX}, v48
    v_add_u32 v48, {CA}, v48
    v_lshlrev_b32 v2, 2, v3
    v_xor_b32 v2, v2, v5
    v_lshlrev_b32 v2, 4, v2
    v_lshl_add_u32 v2, v3, 10, v2
    s_add_u32 s3, s24, {YX}
    v_add_u32 v2, s3, v2
    v_lshrrev_b32 v49, 4, v6
    v_lshlrev_b32 v49, 14, v49
    v_lshrrev_b32 v50, 2, v5
    v_lshl_add_u32 v49, v50, 10, v49
    v_and_b32 v50, 1, v5
    v_lshl_add_u32 v49, v50, 9, v49
    v_and_b32 v50, 15, v6
    v_lshl_add_u32 v49, v50, 4, v49
    v_bfe_u32 v50, v5, 1, 1
    v_lshl_add_u32 v49, v50, 3, v49
    s_lshl_b32 s3, s48, 5
    s_lshl_b32 s7, s49, 3
    s_add_u32 s3, s3, s7
    v_subrev_u32 v50, s3, v6
    v_cmp_lt_u32 vcc, 7, v50
    v_mov_b32 v50, {OOB}
    v_cndmask_b32 v49, v49, v50, vcc
    v_lshlrev_b32 v51, 3, v6
    v_cndmask_b32 v51, v51, v50, vcc
    v_cmp_lt_u32 vcc, 3, v1
    v_cndmask_b32 v7, v51, v50, vcc
    s_sub_u32 s24, s21, s3
    s_add_u32 s24, s24, 3
    v_lshrrev_b32 v50, 2, v5
    v_lshlrev_b32 v50, 10, v50
    v_and_b32 v51, 3, v5
    v_lshl_add_u32 v50, v51, 8, v50
    v_lshl_add_u32 v50, v3, 4, v50
    s_lshl_b32 s3, s25, 14
    s_lshl_b32 s7, s26, 6
    s_add_u32 s3, s3, s7
    s_add_u32 s3, s3, {YX}
    v_add_u32 v50, s3, v50
    s_lshl_b32 s3, s25, 14
    s_lshl_b32 s7, s25, 13
    s_add_u32 s3, s3, s7
    s_add_u32 s3, s3, {YX}
    v_add_u32 v226, s3, v{V_L16}
    s_xor_b32 s3, s3, 16384
    v_add_u32 v227, s3, v{V_L16}
    v_lshl_add_u32 v228, v44, 3, v45
    v_lshlrev_b32 v228, 8, v228
    v_and_b32 v229, 1, v44
    v_lshl_add_u32 v229, v229, 2, v45
    v_lshlrev_b32 v229, 1, v229
    s_lshl_b32 s3, s26, 2
    v_xor_b32 v229, s3, v229
    v_lshrrev_b32 v51, 1, v46
    v_add_u32 v229, v229, v51
    v_lshl_add_u32 v228, v229, 4, v228
    v_and_b32 v51, 1, v46
    v_lshl_add_u32 v228, v51, 3, v228
    s_lshl_b32 s3, s25, 16
    v_add_u32 v228, s3, v228            ; W1 tr h=0
    v_xor_b32 v229, 32, v228
    v_mov_b32 v{V_GC1}, {hx(GC1)}
    s_mov_b32 s52, {hx(GC2)}
    s_mov_b32 s53, {hx(GC2)}
    s_and_b32 s3, s50, 3
    v_cmp_gt_u32 s[34:35], s3, v4
    """)
    w64_dma_lane(k, V_D1K, 1024, 51)
    w64_dma_lane(k, V_D35, 3584, 51)
    w64_tr_lane(k, V_TR, 51, 52)
    k(f"""
    s_and_b32 s55, s5, 7                ; nt
    s_lshl_b32 s27, s54, 2
    s_add_u32 s27, s27, s26
    s_and_b32 s57, s5, 15               ; nt3
    s_lshl_b32 s36, s6, 13
    s_lshl_b32 s3, s55, 7
    s_add_u32 s36, s36, s3
    s_mul_i32 s37, s6, 28672
    s_lshl_b32 s3, s57, 8
    s_add_u32 s37, s37, s3
    s_mul_i32 s38, s25, {28 * 32768}
    s_lshl_b32 s3, s26, 13
    s_add_u32 s38, s38, s3
    s_lshl_b32 s3, s55, 7
    s_add_u32 s38, s38, s3
    s_lshl_b32 s39, s26, 10
    v_mul_u32_u24 v230, 3584, v1
    s_lshr_b32 s3, s5, 4
    s_lshl_b32 s3, s3, 2
    s_add_u32 s3, s3, s26
    s_mul_i32 s3, s3, {64 * 3584}
    s_lshl_b32 s7, s57, 8
    s_add_u32 s3, s3, s7
    s_add_u32 s58, s3, 128
    """)
    srd(k, 60, P('B_w3'), 512 * 3584)
    k(f"s_cmp_ge_u32 s57, 14\ns_cselect_b32 s62, 0, s62")
    k.wait_vm("crit")
    k("s_barrier")
    stamp(k)
    rds = []
    for i4 in range(4): rds.append(f"ds_read_b128 {q4(8+4*i4)}, v2 offset:{256*i4}")
    for hi in range(2):
        for i4 in range(4):
            for h in range(2):
                rds.append(f"ds_read_b64_tr_b16 {pr((160 if hi else 24)+4*i4+2*h)}, v47 offset:{YRS*(128*i4 + 4*h) + 8*hi}")
    for n in range(8):
        for vec in range(3):
            rds.append(f"ds_read_b128 {q4(64+32*vec+4*n)}, v48 offset:{2048*vec + 512*(n//2) + 16*(n%2)}")
    for n, r in enumerate(rds):
        if n >= 14: k("s_waitcnt lgkmcnt(13)")
        k(r)
        if 20 <= n < 36:
            p = n - 20
            unpack(k, 192 + 2 * p, 193 + 2 * p, 8 + p)
    for p in range(16): k(f"v_cndmask_b32 v{24+p}, v{24+p}, v{160+p}, s[34:35]")
    k("s_waitcnt lgkmcnt(0)\ns_barrier")
    stamp(k)
    def bdma():
        L = k.label("bd")
        k(f"""
        s_cmp_ge_u32 s6, 4
        s_cbranch_scc1 {L}
        s_add_u32 m0, s23, {YX}
        s_add_u32 s7, s23, {MODC + 6144}
        buffer_load_dwordx4 v{V_L16}, s[28:31], s7 offen lds
        {L}:
        """)
    def w3touch():
        L = k.label("wt")
        k(f"""
        s_cmp_lt_u32 s6, 4
        s_cbranch_scc1 {L}
        buffer_load_dword v231, v230, s[60:63], s58 offen
        {L}:
        """)
    k.bg([bdma] + [(lambda a: (lambda: w1dma(a)))(a) for a in range(9, 16)])
    for p in range(16):
        x = 192 + 2 * p; t = 52 + 4 * (p & 1)
        unpack(k, t, t + 1, 24 + p)
        k(f"""
        v_pk_fma_f32 {pr(t+2)}, {pr(x)}, v[42:43], v[42:43] {bc}
        v_pk_fma_f32 {pr(t+2)}, {pr(t+2)}, {pr(96+2*p)}, {pr(64+2*p)}
        v_pk_mul_f32 {pr(t)}, {pr(t)}, {pr(128+2*p)}
        v_pk_fma_f32 {pr(x)}, {pr(t+2)}, {pr(t)}, {pr(x)}
        v_cvt_pk_bf16_f32 v{8+p}, v{x}, v{x+1}
        """)
        if p < 8: k.tick()
    assert not k.bgq
    dot_stats(k, 40, range(8, 24), True)
    allreduce(k, 40, (4, 8))
    stats_finish(k, 40, 42)
    srd(k, 16, P('B_w2'), 0x80000)
    stamp(k)
    k("s_waitcnt vmcnt(0)\ns_barrier")
    stamp(k)
    k.vm_log = []
    rds = []
    for n in range(8):
        for vec in range(2):
            rds.append(f"ds_read_b128 {q4(128+32*vec+4*n)}, v225 offset:{2048*vec + 512*(n//2) + 16*(n%2)}")
    for ks in range(8):
        for h in range(2):
            for jh in range(2):
                rds.append(f"ds_read_b64_tr_b16 {pr(64+8*ks+4*h+2*jh)}, v{228+h} offset:{8192*ks + 1024*jh}")
    for r in rds[:12]: k(r)
    only_wave(k, 0, pub)
    w3touch()
    L = k.label("nost")
    k(f"s_cmp_ge_u32 s24, 11\ns_cbranch_scc1 {L}")
    for i4 in range(4):
        k(f"s_mov_b32 s3, {X1 + 4096 * i4}")
        for a in range(2):
            k(f"buffer_store_dwordx2 {pr(8+4*i4+2*a)}, v49, s[28:31], s3 offen offset:{256*a} sc1")
    k(f"s_mov_b32 s3, {ST2}\nbuffer_store_dwordx2 v[42:43], v7, s[28:31], s3 offen sc1")
    k(f"{L}:")
    ri = 12
    for p in range(16):
        x = 192 + 2 * p
        k(f"v_pk_fma_f32 {pr(x)}, {pr(x)}, v[42:43], v[42:43] {bc}")
        if p % 2 == 0:
            need = p + 2
            k(f"s_waitcnt lgkmcnt({min(ri - need, 11)})")
        k(f"""
        v_pk_fma_f32 {pr(x)}, {pr(x)}, {pr(160+2*p)}, {pr(128+2*p)}
        v_cvt_pk_bf16_f32 v{24+p}, v{x}, v{x+1}
        """)
        for _ in range(2):
            if ri < len(rds): k(rds[ri]); ri += 1
    k("s_waitcnt lgkmcnt(8)")
    while ri < len(rds): k(rds[ri]); ri += 1
    dot_stats(k, 40, range(24, 32), True)
    k("s_waitcnt lgkmcnt(0)\ns_barrier")
    stamp(k)
    def w2dma(a):
        k(f"s_add_u32 m0, s23, {8192 * a}\ns_add_u32 s7, s36, {65536 * a}")
        k.vm(f"buffer_load_dwordx4 v{V_D1K}, s[16:19], s7 offen lds", "w2")
    W3R = [65536, 0]
    def w3dma(nh, a):
        k(f"s_add_u32 m0, s23, {W3R[nh] + 8192 * a}\ns_add_u32 s7, s37, {128 * nh + 8 * 28672 * a}")
        k.vm(f"buffer_load_dwordx4 v{V_D35}, s[60:63], s7 offen lds", f"w3{nh}")
    k.bg([(lambda a: (lambda: w3dma(0, a)))(a) for a in range(8)])
    k.bg([(lambda a: (lambda: w2dma(a)))(a) for a in range(8)])
    dot_stats(k, 40, range(32, 40), False, tick=2)
    allreduce(k, 40, (4, 8))
    stats_finish(k, 40, 42)
    for p in range(16):
        x = 192 + 2 * p
        k(f"""
        v_pk_fma_f32 {pr(x)}, {pr(x)}, v[42:43], v[42:43] {bc}
        v_cvt_pk_bf16_f32 v{24+p}, v{x}, v{x+1}
        """)
        if p % 4 == 3:
            k(f"ds_write_b128 v50, {q4(24+p-3)} offset:{4096*(p//4)}")
            k.tick()
    k("s_waitcnt lgkmcnt(0)\ns_barrier")
    stamp(k)
    def xrd(ks):
        for mu in range(2): k(f"ds_read_b128 {q4(128+8*ks+4*mu)}, v{226+mu} offset:{1024*ks}")
    for ks in range(4): xrd(ks)
    for ks in range(8):
        k(f"s_waitcnt lgkmcnt({2 * (min(8, ks + 4) - ks - 1)})")
        for h in range(2):
            for mu in range(2):
                a = 192 + 8 * h + 4 * mu
                c = q4(a) if ks else "0"
                k(f"v_mfma_f32_16x16x32_bf16 {q4(a)}, {q4(64+8*ks+4*h)}, {q4(128+8*ks+4*mu)}, {c}")
        if ks + 4 < 8: xrd(ks + 4)
        k.tick()
    assert not k.bgq
    k(f"""
    s_lshl_b32 s3, s6, 11
    s_add_u32 s3, s3, {YX}
    v_add_u32 v230, s3, v{V_L16}
    v_and_b32 v54, 15, v1
    s_lshl_b32 s3, s48, 5
    s_lshl_b32 s7, s25, 4
    s_add_u32 s3, s3, s7
    s_add_u32 s3, s3, s50
    v_add_u32 v54, s3, v54
    v_cmp_gt_u32 vcc, 2048, v54
    s_lshl_b32 s3, s48, 1
    s_add_u32 s3, s3, s25
    s_lshl_b32 s3, s3, 4
    s_lshl_b32 s7, s49, 2
    s_add_u32 s3, s3, s7
    s_add_u32 s3, s3, s26
    s_lshl_b32 s3, s3, 10
    s_add_u32 s20, s3, {HS}
    v_xor_b32 v238, 8192, v230
    s_barrier
    ds_write_b128 v230, v[196:199]
    ds_write_b128 v230, v[204:207] offset:1024
    """)
    stamp(k)
    only_wave(k, 0, lambda: sync_table_issue(k, VS))
    k(f"""
    s_waitcnt lgkmcnt(0)
    s_barrier
    ds_read_b128 v[196:199], v238
    ds_read_b128 v[204:207], v238 offset:1024
    s_waitcnt lgkmcnt(0)
    v_pk_add_f32 v[192:193], v[192:193], v[196:197]
    v_pk_add_f32 v[194:195], v[194:195], v[198:199]
    v_pk_add_f32 v[200:201], v[200:201], v[204:205]
    v_pk_add_f32 v[202:203], v[202:203], v[206:207]
    """)
    for l in gelu_items(k, [192, 194, 200, 202], 208, V_GC1): k(l)
    k(f"""
    v_cvt_pk_bf16_f32 v196, v192, v193
    v_cvt_pk_bf16_f32 v197, v194, v195
    v_cvt_pk_bf16_f32 v198, v200, v201
    v_cvt_pk_bf16_f32 v199, v202, v203
    v_cndmask_b32 v196, 0, v196, vcc
    v_cndmask_b32 v197, 0, v197, vcc
    v_cndmask_b32 v198, 0, v198, vcc
    v_cndmask_b32 v199, 0, v199, vcc
    buffer_store_dwordx4 v[196:199], v{V_L16}, s[28:31], s20 offen sc1
    """)
    stamp(k)
    k(f"""
    s_lshl_b32 s58, s54, 7
    s_add_u32 s58, s58, {FLAGS + 4096}
    s_lshl_b32 s3, s55, 2
    s_add_u32 s59, s58, s3
    s_and_b32 s24, s5, 24
    """)
    k(f"s_lshl_b32 s3, s25, 6\ns_lshl_b32 s22, s25, 15")
    for eta in range(4):
        k(f"s_xor_b32 s7, s3, {32 * eta}\nv_xor_b32 v{56+eta}, s7, v{V_TR}\nv_add_u32 v{56+eta}, s22, v{56+eta}")
    k(f"""
    s_lshl_b32 s3, s27, 4
    s_lshl_b32 s7, s25, 3
    s_add_u32 s3, s3, s7
    s_lshl_b32 s3, s3, 10
    s_add_u32 s20, s3, {HS}
    s_add_u32 s21, s20, 4096
    s_lshl_b32 s3, s27, 4
    s_lshl_b32 s7, s55, 1
    s_add_u32 s3, s3, s7
    s_add_u32 s3, s3, s25
    s_lshl_b32 s48, s3, 10
    v_and_b32 v60, 15, v1
    v_lshlrev_b32 v61, 3, v60
    v_lshrrev_b32 v62, 4, v1
    v_lshlrev_b32 v62, 4, v62
    s_lshl_b32 s3, s55, 8
    s_lshl_b32 s7, s25, 7
    s_add_u32 s49, s3, s7
    s_waitcnt vmcnt(0)
    s_barrier
    """)
    k.vm_log = []
    k("v_mov_b32 v231, v238")
    stamp(k)
    def sig1():
        sync_table_check(k, VS)
        sync_signal(k, VS, 59, 4)
    only_wave(k, 0, sig1)
    def preread(addr, n0=0, n1=32, dst=64):
        for phi in range(n0, n1):
            v, off = addr(phi)
            if phi - n0 >= 7 : k("s_waitcnt lgkmcnt(12)")
            k(f"ds_read_b64_tr_b16 {pr(dst+4*phi)}, v{v} offset:{off}")
            k(f"ds_read_b64_tr_b16 {pr(dst+4*phi+2)}, v{v} offset:{off + 2048}")
    preread(lambda phi: (56 + phi % 4, 4096 * (phi // 4)))
    k(f"s_add_u32 s3, s49, {MODC + 6144}")
    for v in range(2):
        for e in range(2):
            k.vm(f"buffer_load_dwordx4 {q4(200-8*v+4*e)}, v62, s[28:31], s3 offen offset:{2048*v + 64*e}", "cc")
    only_wave(k, 0, lambda: sync_poll(k, VS, 58, 8, 4, s_first=24))
    k("s_waitcnt lgkmcnt(0)\ns_barrier")
    stamp(k)
    for a in range(8):
        k.vm(f"buffer_load_dwordx4 {q4(8+4*a)}, v{V_L16}, s[28:31], s{20 + a // 4} offen offset:{1024*(a%4)} sc1", f"x{a}")
    k(f"s_add_u32 s3, s48, {X1}")
    k.vm(f"buffer_load_dwordx4 {q4(V_X1)}, v{V_L16}, s[28:31], s3 offen sc1", "ep")
    k(f"s_lshl_b32 s3, s27, 7\ns_add_u32 s3, s3, {ST2}")
    k.vm(f"buffer_load_dwordx2 v[208:209], v61, s[28:31], s3 offen sc1", "ep")
    k("s_barrier")
    k.bg([(lambda a: (lambda: w3dma(1, a)))(a) for a in range(8)])
    for ks in range(8):
        k.wait_vm(f"x{ks}")
        for eta in range(4):
            c = q4(40 + 4 * eta) if ks else "0"
            k(f"v_mfma_f32_16x16x32_bf16 {q4(40+4*eta)}, {q4(64+16*ks+4*eta)}, {q4(8+4*ks)}, {c}")
        k.tick()
    stamp(k)
    k(f"""
    v_lshlrev_b32 v4, 7, v60
    v_lshrrev_b32 v5, 5, v1
    v_lshl_add_u32 v4, v5, 2, v4
    v_and_b32 v5, 16, v1
    v_lshl_add_u32 v4, v5, 26, v4
    s_lshl_b32 s3, s27, 11
    s_lshl_b32 s7, s55, 4
    s_add_u32 s3, s3, s7
    s_lshl_b32 s7, s25, 3
    s_add_u32 s3, s3, s7
    s_add_u32 s20, s3, {STAT}
    s_add_u32 s21, s48, {X1P}
    ds_write_b128 v230, v[48:51]
    ds_write_b128 v230, v[52:55] offset:1024
    """)
    k.wait_vm("ep")
    for e in range(4): unpack(k, 8 + 2 * e, 9 + 2 * e, V_X1 + e)
    for e in range(4): k(f"v_pk_fma_f32 {pr(8+2*e)}, {pr(8+2*e)}, v[208:209], v[208:209] {bc}")
    for e in range(4): k(f"v_pk_fma_f32 {pr(8+2*e)}, {pr(8+2*e)}, {pr(192+2*e)}, {pr(200+2*e)}")
    k(f"""
    s_waitcnt lgkmcnt(0)
    s_barrier
    ds_read_b128 v[48:51], v231
    ds_read_b128 v[52:55], v231 offset:1024
    """)
    for e in range(4): k(f"v_cvt_pk_bf16_f32 v{16+e}, v{8+2*e}, v{9+2*e}")
    for e in range(4): unpack(k, 8 + 2 * e, 9 + 2 * e, 16 + e)
    for e in range(4): k(f"v_pk_add_f32 {pr(40+2*e)}, {pr(40+2*e)}, {pr(8+2*e)}")
    k("s_waitcnt lgkmcnt(0)")
    for e in range(4): k(f"v_pk_add_f32 {pr(40+2*e)}, {pr(40+2*e)}, {pr(48+2*e)}")
    for e in range(4): k(f"v_cvt_pk_bf16_f32 v{V_X1P+e}, v{40+2*e}, v{41+2*e}")
    k(f"buffer_store_dwordx4 {q4(V_X1P)}, v{V_L16}, s[28:31], s21 offen sc1")
    dot_stats(k, 50, range(V_X1P, V_X1P + 4), True)
    k(f"""
    v_permlane32_swap_b32 v50, v51
    v_add_f32 v50, v50, v51
    v_mov_b32 v51, v50
    v_permlane16_swap_b32 v50, v51
    v_add_f32 v50, v50, v51
    buffer_store_dword v50, v4, s[28:31], s20 offen sc1
    """)
    stamp(k)
    srd(k, 16, P('B_w4'), 1792 * 1024)
    k(f"""
    s_lshl_b32 s58, s56, 7
    s_add_u32 s58, s58, {FLAGS + 8192}
    s_lshl_b32 s3, s57, 2
    s_add_u32 s59, s58, s3
    s_and_b32 s24, s5, 16
    s_and_b32 s3, s26, 1
    s_lshl_b32 s3, s3, 6
    v_xor_b32 v56, s3, v{V_TR}
    s_lshr_b32 s3, s26, 1
    s_xor_b32 s3, s3, 1
    s_lshl_b32 s3, s3, 16
    v_add_u32 v56, s3, v56
    v_xor_b32 v57, 32, v56
    s_lshl_b32 s3, s25, 16
    v_add_u32 v58, s3, v{V_L16}
    s_lshl_b32 s21, s25, 16
    s_lshl_b32 s3, s26, 12
    s_add_u32 s21, s21, s3
    s_lshl_b32 s20, s56, 17
    s_add_u32 s20, s20, s21
    s_add_u32 s20, s20, {X1P}
    v_lshlrev_b32 v59, 5, v0
    s_lshl_b32 s22, s56, 14
    s_add_u32 s22, s22, {STAT}
    v_lshrrev_b32 v60, 2, v0
    v_lshlrev_b32 v60, 3, v60
    v_add_u32 v60, {K2_LDS - 1024}, v60
    s_lshl_b32 s3, s25, 9
    s_add_u32 s3, s3, {K2_LDS - 1024}
    v_add_u32 v61, s3, v61
    s_lshl_b32 s50, s56, 3
    s_lshl_b32 s3, s25, 2
    s_add_u32 s50, s50, s3
    s_mul_i32 s50, s50, 56
    s_lshl_b32 s3, s57, 2
    s_add_u32 s50, s50, s3
    s_add_u32 s50, s50, s26
    s_lshl_b32 s50, s50, 10
    s_add_u32 s50, s50, {H3}
    v_mov_b32 v8, {ONES}
    v_mov_b32 v9, {ONES}
    v_mov_b32 v10, {ONES}
    v_mov_b32 v11, {ONES}
    s_waitcnt vmcnt(0)
    s_barrier
    """)
    k.vm_log = []
    stamp(k)
    only_wave(k, 0, lambda: sync_signal(k, VS, 59, 5))
    slots = {}
    def slot_addr(n):
        raise NotImplementedError
    amap = {}
    for j in range(3): amap[j] = (131072 + 4096 * j, 12288)
    for j in range(16): amap[3 + j] = (4096 * j, 65536)
    amap[19] = (131072 + 24576, 4096)
    for j in range(8): amap[20 + j] = amap[j]
    k(f"""
    s_mul_i32 s32, s25, 12288
    s_add_u32 s32, s32, s39
    s_lshl_b32 s33, s25, 16
    s_add_u32 s33, s33, s39
    s_lshl_b32 s34, s25, 12
    s_add_u32 s34, s34, s39
    """)
    sb = {12288: 32, 65536: 33, 4096: 34}
    def w4dma(kap):
        A, B = amap[kap]
        k(f"s_add_u32 m0, s{sb[B]}, {A}\ns_add_u32 s7, s38, {32768 * kap}")
        k.vm(f"buffer_load_dwordx4 v{V_D1K}, s[16:19], s7 offen lds", f"w4_{kap}")
    LI = k.label("idle3"); LG4 = k.label("g4")
    k(f"s_cmp_ge_u32 s57, 14\ns_cbranch_scc1 {LI}")
    preread(lambda phi: (56 + phi % 2, 4096 * (phi // 2)))
    only_wave(k, 0, lambda: sync_poll(k, VS, 58, 16, 5, s_first=24))
    k("s_waitcnt lgkmcnt(0)\ns_barrier")
    stamp(k)
    def xdma(mu, a):
        if a == 0: k(f"s_add_u32 m0, s21, {16384 * mu}\ns_add_u32 s35, s20, {16384 * mu}")
        k.vm(f"buffer_load_dwordx4 v{V_L16}, s[28:31], s35 offen offset:{1024*a} sc1 lds", f"xs{mu}")
    k.vm("buffer_load_dwordx4 v[16:19], v59, s[28:31], s22 offen sc1", "stat")
    k.vm("buffer_load_dwordx4 v[20:23], v59, s[28:31], s22 offen offset:16 sc1", "stat")
    for a in range(4): xdma(0, a)
    k("s_barrier")
    for a in range(4): xdma(1, a)
    for ks in range(16):
        for e in range(2):
            c = q4(192 + 4 * e) if ks else "0"
            k(f"v_mfma_f32_16x16x32_bf16 {q4(192+4*e)}, {q4(64+8*ks+4*e)}, v[8:11], {c}")
    k.wait_vm("stat")
    k(f"""
    v_pk_add_f32 v[16:17], v[16:17], v[18:19]
    v_pk_add_f32 v[20:21], v[20:21], v[22:23]
    v_pk_add_f32 v[16:17], v[16:17], v[20:21]
    v_add_f32_dpp v16, v16, v16 quad_perm:[1,0,3,2] row_mask:0xf bank_mask:0xf
    v_add_f32_dpp v17, v17, v17 quad_perm:[1,0,3,2] row_mask:0xf bank_mask:0xf
    v_add_f32_dpp v16, v16, v16 quad_perm:[2,3,0,1] row_mask:0xf bank_mask:0xf
    v_add_f32_dpp v17, v17, v17 quad_perm:[2,3,0,1] row_mask:0xf bank_mask:0xf
    """)
    stats_finish(k, 16, 18)
    k("ds_write_b64 v60, v[18:19]")
    epi = []
    for mu in range(4):
        k.wait_vm(f"xs{mu}", extra="lgkmcnt(0)")
        k("s_barrier")
        stamp(k)
        acc = 200 + 8 * (mu & 1)
        dm = []
        if mu == 0:
            for m in (2, 3): dm.append((lambda m: (lambda: [xdma(m, a) for a in range(4)]))(m))
        else:
            lo = 0 if mu == 1 else 3 + 4 * (mu - 1)
            dm += [(lambda kap: (lambda: w4dma(kap)))(kap) for kap in range(lo, 3 + 4 * mu)]
        if mu == 0:
            for m in range(4): k(f"ds_read_b64 {pr(216+2*m)}, v61 offset:{128*m}")
        D = 6
        def xr(ks): k(f"ds_read_b128 {q4(8+4*(ks%8))}, v58 offset:{16384*mu + 1024*ks}")
        for ks in range(D): xr(ks)
        for ks in range(16):
            k(f"s_waitcnt lgkmcnt({min(D, 16 - ks) - 1})")
            for e in range(2):
                c = q4(acc + 4 * e) if ks else "0"
                k(f"v_mfma_f32_16x16x32_bf16 {q4(acc+4*e)}, {q4(64+8*ks+4*e)}, {q4(8+4*(ks%8))}, {c}")
                for _ in range(2):
                    if epi and ks >= 1: epi.pop(0)()
            if ks + D < 16: xr(ks + D)
            if dm and ks % (6 if mu == 0 else 2) == 0: dm.pop(0)()
        while dm: dm.pop(0)()
        while epi: epi.pop(0)()
        st = 216 + 2 * mu
        items = []
        for p in range(4): items.append(f"v_pk_mul_f32 {pr(40+2*p)}, {pr(192+2*p)}, {pr(st)} op_sel:[0,1] op_sel_hi:[1,1]")
        for p in range(4): items.append(f"v_pk_fma_f32 {pr(acc+2*p)}, {pr(acc+2*p)}, {pr(st)}, {pr(40+2*p)} op_sel_hi:[1,0,1]")
        items += gelu_items(k, [acc + 2 * p for p in range(4)], 40, V_GC1)
        for p in range(4): items.append(f"v_cvt_pk_bf16_f32 v{48+p}, v{acc+2*p}, v{acc+2*p+1}")
        epi = [(lambda t: (lambda: k(t)))(t) for t in items]
        def st_(mu=mu):
            k(f"s_add_u32 s7, s50, {57344 * mu}")
            k.vm(f"buffer_store_dwordx4 v[48:51], v{V_L16}, s[28:31], s7 offen sc1", "h3")
        epi.append(st_)
    stamp(k)
    while epi: epi.pop(0)()
    k(f"""
    s_add_u32 s58, s58, 4096
    s_add_u32 s59, s59, 4096
    s_waitcnt vmcnt(0)
    s_barrier
    """)
    stamp(k)
    only_wave(k, 0, lambda: sync_signal(k, VS, 59, 6))
    k(f"s_branch {LG4}\n{LI}:")
    sv = k.nstamp
    k(f"""
    s_and_b32 s3, s5, 1
    s_mul_i32 s3, s3, {28 * 32768}
    s_lshr_b32 s7, s5, 4
    s_mul_i32 s7, s7, {208 * 1024}
    s_add_u32 s3, s3, s7
    s_add_u32 s3, s3, {15 * 32768}
    """)
    srd_s(k, 8, P('B_w4'), 208 * 1024, 3)
    k(f"v_lshlrev_b32 v8, 7, v0")
    for kap in range(15): w4dma(kap)
    for n in range(4): k(f"s_mov_b32 s3, {65536*n}\nbuffer_load_dword v{9+n}, v8, s[8:11], s3 offen")
    k(f"""
    s_add_u32 s58, s58, 4096
    s_waitcnt vmcnt(0)
    s_barrier
    {LG4}:
    """)
    k.vm_log = []
    srd(k, 12, P('out'), 0x200000)
    k(f"s_lshl_b32 s3, s25, 6")
    for eta in range(4):
        k(f"s_xor_b32 s7, s3, {32 * eta}\nv_xor_b32 v{40+eta}, s7, v{V_TR}")
    k(f"s_mul_i32 s3, s25, 12288\ns_add_u32 s3, s3, 131072\ns_lshl_b32 s7, s25, 16\ns_lshl_b32 s35, s25, 12\ns_add_u32 s35, s35, 131072")
    for eta in range(4):
        k(f"v_add_u32 v{44+eta}, s3, v{40+eta}\nv_add_u32 v{48+eta}, s7, v{40+eta}\nv_add_u32 v{52+eta}, s35, v{40+eta}")
    def waddr(kap, eta):
        A, B = amap[kap]
        if B == 12288: return (44 + eta, A - 131072)
        if B == 65536: return (48 + eta, A)
        return (52 + eta, A - 131072)
    preread(lambda phi: waddr(phi // 4, phi % 4))
    k(f"""
    s_mul_i32 s20, s27, 56
    s_mul_i32 s3, s25, 28
    s_add_u32 s20, s20, s3
    s_lshl_b32 s20, s20, 10
    s_add_u32 s20, s20, {H3}
    s_add_u32 s3, s49, {MODC + 10240}
    """)
    k.vm(f"buffer_load_dwordx4 v[56:59], v62, s[28:31], s3 offen", "gb")
    k.vm(f"buffer_load_dwordx4 v[60:63], v62, s[28:31], s3 offen offset:64", "gb")
    only_wave(k, 0, lambda: sync_poll(k, VS, 58, 14, 6, s_first=24))
    k("s_waitcnt lgkmcnt(0)\ns_barrier")
    stamp(k)
    def xreg(kap):
        kk = kap % 16
        return 8 + 4 * kk if kk < 8 else 192 + 4 * (kk - 8)
    def xl(kap):
        k(f"s_add_u32 s7, s20, {4096 * (kap // 4)}")
        k.vm(f"buffer_load_dwordx4 {q4(xreg(kap))}, v{V_L16}, s[28:31], s7 offen offset:{1024*(kap%4)} sc1", f"x{kap}")
    for kap in range(4): xl(kap)
    k("s_barrier")
    for kap in range(4, 12): xl(kap)
    ACC = [40, 224, 236, 4]
    D = 6
    def rd(phi):
        kap, eta = divmod(phi, 4)
        if eta == 0 and kap in (15, 19, 23):
            last = {15: 18, 19: 22, 23: 27}[kap]
            k.wait_vm(f"w4_{last}")
            k("s_barrier")
        v, off = waddr(kap, eta)
        b = 64 + 4 * (phi % 8)
        k(f"ds_read_b64_tr_b16 {pr(b)}, v{v} offset:{off}")
        k(f"ds_read_b64_tr_b16 {pr(b+2)}, v{v} offset:{off + 2048}")
    for phi in range(112):
        kap, eta = divmod(phi, 4)
        if eta == 0: k.wait_vm(f"x{kap}")
        if phi >= 32:
            k(f"s_waitcnt lgkmcnt({2 * (min(D, 112 - phi) - 1)})")
            wb = 64 + 4 * (phi % 8)
        else: wb = 64 + 4 * phi
        c = q4(ACC[eta]) if kap else "0"
        k(f"v_mfma_f32_16x16x32_bf16 {q4(ACC[eta])}, {q4(wb)}, {q4(xreg(kap))}, {c}")
        if 32 <= phi + D < 112: rd(phi + D)
        if eta == 1 and kap + 12 < 28: xl(kap + 12)
        if eta == 3 and kap + 15 < 28: w4dma(kap + 15)
        if STAMPS and phi % 32 == 31: stamp(k)
    k(f"""
    v_and_b32 v2, 15, v1
    v_lshlrev_b32 v2, 10, v2
    v_lshrrev_b32 v3, 4, v1
    v_lshl_add_u32 v2, v3, 3, v2
    s_lshl_b32 s3, s27, 14
    s_lshl_b32 s7, s55, 7
    s_add_u32 s3, s3, s7
    s_lshl_b32 s7, s25, 6
    s_add_u32 s3, s3, s7
    s_barrier
    ds_write_b128 v230, {q4(ACC[2])}
    ds_write_b128 v230, {q4(ACC[3])} offset:1024
    """)
    stamp(k)
    for e in range(4): unpack(k, 8 + 2 * e, 9 + 2 * e, V_X1P + e)
    for e in range(4): unpack(k, 16 + 2 * e, 17 + 2 * e, V_X1 + e)
    ap = [ACC[0], ACC[0] + 2, ACC[1], ACC[1] + 2]
    for e in range(4): k(f"v_pk_add_f32 {pr(ap[e])}, {pr(ap[e])}, {pr(8+2*e)}")
    k(f"""
    s_waitcnt lgkmcnt(0)
    s_barrier
    ds_read_b128 v[24:27], v231
    ds_read_b128 v[28:31], v231 offset:1024
    s_waitcnt lgkmcnt(0)
    """)
    for e in range(4): k(f"v_pk_add_f32 {pr(ap[e])}, {pr(ap[e])}, {pr(24+2*e)}")
    for e in range(4): k(f"v_pk_fma_f32 {pr(ap[e])}, {pr(ap[e])}, {pr(56+2*e)}, {pr(16+2*e)}")
    for e in range(4): k(f"v_cvt_pk_bf16_f32 v{8+e}, v{ap[e]}, v{ap[e]+1}")
    k(f"""
    buffer_store_dwordx2 v[8:9], v2, s[12:15], s3 offen
    buffer_store_dwordx2 v[10:11], v2, s[12:15], s3 offen offset:32
    """)
    finish(k, 1)
    k("code_end:")
    return k

if __name__ == "__main__":
    if "stamps" in sys.argv: STAMPS = True
    if "slow" in sys.argv: FORCE_SLOW = True
    if "nocodepf" in sys.argv: CODEPF = False
    if "tailwarm" in sys.argv: TAILWARM = True
    ks = [kernel_1(), kernel_2()]
    ls = [("k1_kernel", 256, 512, K1_LDS), ("k2_kernel", 256, 512, K2_LDS)]
    open(sys.argv[1], "w").write(build(ls, ks))
```

```python
import sys, struct
from asmlib import *

KVT = 0x000000; KVT_SZ = 0x200000
Y2B = 0x200000; Y2B_SZ = 0x200000
MODC = 0x4F0000
QST = 0x4F4000; QST_SZ = 16384
FLAGS = 0x400000
HS = 0x500000
ST2 = 0x4F8000
XL = 0x700000; XROWS = 272; XL_G = 64 * XROWS * 16
X1 = 0x980000 - 0x80000 + 0x40000
X1P = 0xB40000
STAT = 0xD40000
H3 = 0xE00000
WS_END = 0x1500000
DBGWS = 0x1800000
STAMPS = False
FORCE_SLOW = False
TAILWARM = True
CODEPF = True
W1D_START = 8
PKLAST = False
EXPA = False
HELP_BAR = 14
MALLWARM = False

def P(n): return 64 + ARG[n] // 4
LOG2E = 1.4426950408889634
def f2u(x): return struct.unpack('<I', struct.pack('<f', x))[0]
def hx(x): return "0x%08x" % f2u(x)
def pr(r): return f"v[{r}:{r+1}]"
def q4(r): return f"v[{r}:{r+3}]"
ONES = 0x3f803f80
GC1 = -2.0 * LOG2E * 0.7978845608028654
GC2 = GC1 * 0.044715
OOB = 0x80000000

class KK(K):
    def __init__(self, *a, **kw):
        super().__init__(*a, **kw)
        self.vm_log = []
        self.bgq = []
        self.nstamp = 0
    def vm(self, text, tag="x", maybe=False):
        self(text)
        if not maybe: self.vm_log.append(tag)
    def wait_vm(self, *tags, extra=""):
        last = -1
        for i, t in enumerate(self.vm_log):
            if t in tags: last = i
        assert last >= 0, tags
        n = len(self.vm_log) - 1 - last
        assert n <= 63
        self(f"s_waitcnt vmcnt({n}) {extra}")
    def bg(self, items): self.bgq += items
    def tick(self, n=1):
        for _ in range(n):
            if self.bgq: self.bgq.pop(0)()
    def flush(self):
        while self.bgq: self.tick()

def srd(k, d, ptr, size, off=0):
    if off: k(f"s_add_u32 s{d}, s{ptr}, {off}\ns_addc_u32 s{d+1}, s{ptr+1}, 0")
    else: k(f"s_mov_b32 s{d}, s{ptr}\ns_mov_b32 s{d+1}, s{ptr+1}")
    k(f"s_mov_b32 s{d+2}, {size}\ns_mov_b32 s{d+3}, 0x20000")
def srd_s(k, d, ptr, size, soff):
    k(f"s_add_u32 s{d}, s{ptr}, s{soff}\ns_addc_u32 s{d+1}, s{ptr+1}, 0")
    k(f"s_mov_b32 s{d+2}, {size}\ns_mov_b32 s{d+3}, 0x20000")

def stamp(k, idx=None):
    if not STAMPS: return
    if idx is None: idx = k.nstamp
    k.nstamp = idx + 1
    k(f"""
    s_memtime s[98:99]
    s_waitcnt lgkmcnt(0)
    s_sub_u32 s98, s98, s96
    v_writelane_b32 v254, s98, {idx}
    """)
def stamp_out(k, kid):
    if not STAMPS: return
    stamp(k)
    k(f"""
    s_lshl_b32 s98, s2, 3
    s_add_u32 s98, s98, s6
    s_lshl_b32 s98, s98, 8
    s_add_u32 s98, s98, {DBGWS + kid * 0x80000}
    v_and_b32 v255, 63, v0
    v_lshlrev_b32 v255, 2, v255
    v_add_u32 v255, s98, v255
    global_store_dword v255, v254, s[{P('ws')}:{P('ws')+1}]
    """)

def entry(k):
    if STAMPS:
        k.vgpr = 256
        k("s_memtime s[96:97]\nv_mov_b32 v254, 0")
    k(f"""
    s_cmp_ge_u32 s2, 256
    s_cbranch_scc1 {k.name}_end
    s_load_dwordx16 s[64:79], s[0:1], 0
    s_load_dwordx16 s[80:95], s[0:1], 64
    v_lshrrev_b32 v1, 6, v0
    s_and_b32 s4, s2, 7
    s_lshr_b32 s5, s2, 3
    v_readfirstlane_b32 s6, v1
    v_and_b32 v1, 63, v0
    """)
def finish(k, kid=0):
    stamp_out(k, kid)
    k(f"{k.name}_end:\ns_endpgm")

def unpack(k, dlo, dhi, src):
    k(f"v_lshlrev_b32 v{dlo}, 16, v{src}\nv_and_b32 v{dhi}, 0xffff0000, v{src}")

SPIN_MAX = 2000000
KTRY = 16
GFL = FLAGS + 0x10000
def sync_signal(k, VS, s_off):
    k(f"""
    v_mov_b32 v{VS+4}, s{s_off}
    s_mov_b64 s[46:47], exec
    s_mov_b64 exec, 1
    """)
    if not FORCE_SLOW: k(f"buffer_store_dwordx2 v[{VS}:{VS+1}], v{VS+4}, s[28:31], 0 offen")
    k(f"""
    s_mov_b64 exec, s[46:47]
    s_mov_b32 s44, 1
    """)
def sync_gflush(k, VS, ph):
    L = k.label("gf")
    k(f"""
    s_cmp_eq_u32 s44, 0
    s_cbranch_scc1 {L}
    s_lshl_b32 s3, s4, 5
    s_add_u32 s3, s3, s5
    s_lshl_b32 s3, s3, 7
    s_add_u32 s3, s3, {GFL + ph * 32768}
    v_lshlrev_b32 v{VS+5}, 3, v1
    s_mov_b64 s[46:47], exec
    s_mov_b64 exec, 0xffff
    buffer_store_dwordx2 v[{VS}:{VS+1}], v{VS+5}, s[28:31], s3 offen sc1
    s_mov_b64 exec, s[46:47]
    s_mov_b32 s44, 0
    {L}:
    """)
def sync_poll(k, VS, s_line, nflags, ph, s_first=None, idxreg=None):
    L = k.label("pl"); E = k.label("ple"); G = k.label("plg")
    if idxreg is None: k(f"v_min_u32 v{VS+4}, {nflags - 1}, v1\nv_lshlrev_b32 v{VS+4}, 3, v{VS+4}")
    else: k(f"v_lshlrev_b32 v{VS+4}, 3, v{idxreg}")
    k(f"""
    s_mov_b32 s45, 0
    {L}:
    buffer_load_dwordx2 v[{VS+2}:{VS+3}], v{VS+4}, s[28:31], s{s_line} offen sc1
    s_waitcnt vmcnt(0)
    v_cmp_ne_u64 vcc, v[{VS}:{VS+1}], v[{VS+2}:{VS+3}]
    s_cbranch_vccz {E}
    s_add_u32 s45, s45, 1
    s_cmp_lt_u32 s45, {KTRY}
    s_cbranch_scc1 {L}
    s_mov_b64 s[40:41], vcc
    """)
    sync_gflush(k, VS, ph)
    k(f"""
    s_lshl_b32 s3, s4, 5
    """)
    if s_first is not None: k(f"s_add_u32 s3, s3, s{s_first}")
    k(f"""
    s_lshl_b32 s3, s3, 7
    s_add_u32 s3, s3, {GFL + ph * 32768}
    v_lshlrev_b32 v{VS+5}, 4, v{VS+4}
    buffer_load_dwordx2 v[{VS+2}:{VS+3}], v{VS+5}, s[28:31], s3 offen sc1
    s_waitcnt vmcnt(0)
    v_cmp_ne_u64 vcc, v[{VS}:{VS+1}], v[{VS+2}:{VS+3}]
    s_and_b64 vcc, vcc, s[40:41]
    s_cbranch_vccz {E}
    s_cmp_lt_u32 s45, {SPIN_MAX}
    s_cbranch_scc1 {L}
    {E}:
    """)
def stagger(k, groups, order=(0, 4, 1, 5, 2, 6, 3, 7)):
    slots = []
    for g in groups:
        for n, w in enumerate(order):
            def f(g=g, w=w, last=(n == len(order) - 1)):
                L = k.label("sg")
                k(f"s_cmp_lg_u32 s6, {w}\ns_cbranch_scc1 {L}")
                save = list(k.vm_log)
                for e in g: e()
                if not last: k.vm_log = save
                k(f"{L}:")
            slots.append(f)
    return slots

def only_wave(k, w, fn):
    L = k.label("ow")
    k(f"s_cmp_lg_u32 s6, {w}\ns_cbranch_scc1 {L}")
    fn()
    k(f"{L}:")

def stats_finish(k, S, out, inv_n=1.0 / 512):
    k(f"""
    v_mul_f32 v{S}, {hx(inv_n)}, v{S}
    v_mul_f32 v{S+1}, {hx(inv_n)}, v{S+1}
    v_fma_f32 v{S+1}, -v{S}, v{S}, v{S+1}
    v_max_f32 v{S+1}, 0, v{S+1}
    v_add_f32 v{S+1}, {hx(1e-5)}, v{S+1}
    v_rsq_f32 v{out}, v{S+1}
    v_mul_f32_e64 v{out+1}, -v{S}, v{out}
    """)
def allreduce(k, S, rots):
    k(f"""
    v_permlane32_swap_b32 v{S}, v{S+1}
    v_add_f32 v{S}, v{S}, v{S+1}
    v_mov_b32 v{S+1}, v{S}
    v_permlane16_swap_b32 v{S}, v{S+1}
    v_add_f32 v{S}, v{S}, v{S+1}
    """)
    for r in rots: k(f"v_add_f32_dpp v{S}, v{S}, v{S} row_ror:{r} row_mask:0xf bank_mask:0xf")
    k(f"v_mov_b32 v{S+1}, v{S}\nv_permlane32_swap_b32 v{S}, v{S+1}")
def dot_stats(k, S, regs, first, tick=0):
    for n, r in enumerate(regs):
        c0 = "0" if (first and n == 0) else f"v{S}"
        c1 = "0" if (first and n == 0) else f"v{S+1}"
        k(f"v_dot2_f32_bf16 v{S}, v{r}, s51, {c0}")
        k(f"v_dot2_f32_bf16 v{S+1}, v{r}, v{r}, {c1}")
        if tick and n % tick == tick - 1: k.tick()

TT = 0
MP = 9216
UR = 25600; UR_CH = 4608
KC = 34816; KC_CS = 4160; KC_CH = 8 * 4160
KT = KC + 2 * KC_CH
VT = KT + 9216
K1_LDS = VT + 8192
RED1 = 0

def conv_body(k, tg, dh):
    tiles = [[0, 3, 4, 7], [1, 2, 5, 6]][tg]
    tmax = tiles[-1]
    def Areg(s, ip): return 32 + 64 * s + 4 * ip
    def Breg(s, e): return 64 + 64 * s + 4 * e
    def order():
        mf = [(ip, ti, t) for ip in range(tmax + 1) for ti, t in enumerate(tiles) if ip <= t]
        seen = [];
        for ip, ti, t in mf:
            for x in (('A', ip), ('B', t - ip)):
                if x not in seen: seen.append(x)
        return mf, seen
    mf, seen = order()
    def loads(s, dl):
        d = 4 * dh + dl
        L = []
        for kind, x in seen:
            if kind == 'A': L.append(f"ds_read_b128 {q4(Areg(s, x))}, v2 offset:{64*d + 512*x}")
            else: L.append(f"ds_read_b128 {q4(Breg(s, x))}, v3 offset:{64*d + 512*(7-x)}")
        return L
    nl = len(seen)
    first = loads(0, 0)
    for l in first[:15]: k(l)
    pending_first = first[15:]
    for dl in range(4):
        s = dl & 1
        nxt = pending_first + (loads(1 - s, dl + 1) if dl < 3 else [])
        npf = len(pending_first)
        issued_cur = nl - npf
        pending_first = []
        ni = 0
        for n, (ip, ti, t) in enumerate(mf):
            needi = max(seen.index(('A', ip)), seen.index(('B', t - ip)))
            tot_issued = issued_cur + ni
            assert needi < tot_issued
            allow = tot_issued - 1 - needi
            k(f"s_waitcnt lgkmcnt({min(allow, 15)})")
            c = q4(8 + 4 * ti) if (dl or ip) else "0"
            k(f"v_mfma_f32_16x16x32_bf16 {q4(8+4*ti)}, {q4(Areg(s, ip))}, {q4(Breg(s, t - ip))}, {c}")
            if ni < len(nxt) and allow < 15:
                k(nxt[ni]); ni += 1
            if dl >= 2 and n % 4 == 1 and n < 16:
                a_ = 4 * (dl - 2) + n // 4
                Lm = k.label("ml")
                k(f"s_cmp_ge_u32 s5, 6\ns_cbranch_scc1 {Lm}\nbuffer_load_dwordx4 {q4(176+4*a_)}, v166, s[52:55], s21 offen\ns_add_u32 s21, s21, {64*6144}\n{Lm}:")
        while ni < len(nxt):
            k("s_waitcnt lgkmcnt(14)"); k(nxt[ni]); ni += 1
    stamp(k, 8)
    keep = [2 * dh, 2 * dh + 1]; send = [2 * (1 - dh), 2 * (1 - dh) + 1]
    for n, ti in enumerate(keep):
        k(f"ds_read_b64 {pr(32+2*n)}, v6 offset:{512*(7-tiles[ti])}")
    k(f"""
    ds_write_b128 v4, {q4(8+4*send[0])} offset:{RED1}
    ds_write_b128 v4, {q4(8+4*send[1])} offset:{RED1 + 1024}
    s_waitcnt lgkmcnt(0)
    s_barrier
    ds_read_b128 v[40:43], v5 offset:{RED1}
    ds_read_b128 v[44:47], v5 offset:{RED1 + 1024}
    """)
    for n, ti in enumerate(keep):
        a = 8 + 4 * ti; b = 48 + 4 * n
        unpack(k, b + 3, b + 2, 32 + 2 * n)
        unpack(k, b + 1, b + 0, 33 + 2 * n)
        k(f"v_pk_fma_f32 {pr(a)}, {pr(b)}, {pr(24)}, {pr(a)} op_sel_hi:[1,0,1]")
        k(f"v_pk_fma_f32 {pr(a+2)}, {pr(b+2)}, {pr(24)}, {pr(a+2)} op_sel_hi:[1,0,1]")
        k(f"s_add_u32 s{46+n}, s24, {tiles[ti] * 32 * 8192}")
    k("s_waitcnt lgkmcnt(0)")
    for n, ti in enumerate(keep):
        a = 8 + 4 * ti
        k(f"""
        v_pk_add_f32 {pr(a)}, {pr(a)}, {pr(40+4*n)}
        v_pk_add_f32 {pr(a+2)}, {pr(a+2)}, {pr(42+4*n)}
        v_cvt_pk_bf16_f32 v{56+2*n}, v{a}, v{a+1}
        v_cvt_pk_bf16_f32 v{57+2*n}, v{a+2}, v{a+3}
        buffer_store_dwordx2 {pr(56+2*n)}, v26, s[12:15], s{46+n} offen
        """)

def kernel_1():
    k = KK("k1_kernel", vgpr=208, sgpr=100)
    VS = 168
    XS = MP
    entry(k)
    k(f"""
    v_lshrrev_b32 v2, 3, v1
    v_lshlrev_b32 v2, 10, v2
    v_and_b32 v3, 7, v1
    v_lshl_add_u32 v2, v3, 4, v2         ; (l>>3)*1024 + 16 (l&7)
    s_lshl_b32 s3, s5, 16
    s_lshl_b32 s7, s4, 7
    s_add_u32 s20, s3, s7
    v_add_u32 v8, s20, v2
    v_add_u32 v8, 0xffffe000, v8
    v_cmp_gt_u32 vcc, 40, v1
    v_mov_b32 v3, {OOB}
    v_cndmask_b32 v8, v8, v3, vcc
    s_mov_b32 s50, s20
    s_lshl_b32 s3, s6, 13
    s_add_u32 s20, s20, s3
    s_lshl_b32 s23, s6, 10
    v_and_b32 v4, 31, v0                 ; cp
    v_lshrrev_b32 v5, 5, v0              ; rg
    s_lshl_b32 s3, s4, 9
    v_lshl_add_u32 v6, v4, 4, s3
    s_lshl_b32 s3, s4, 6
    s_lshl_b32 s7, s5, 1
    s_add_u32 s36, s3, s7                ; d0
    v_lshlrev_b32 v9, 4, v1              ; lane*16
    s_mov_b32 s51, {ONES}
    s_lshl_b32 s26, s4, 8
    s_add_u32 s26, s26, {FLAGS}
    s_lshl_b32 s3, s5, 3
    s_add_u32 s27, s26, s3
    s_lshl_b32 s3, s4, 3
    v_mov_b32 v{VS+5}, s3
    s_memrealtime s[56:57]
    s_waitcnt lgkmcnt(0)
    """)
    srd(k, 28, P('ws'), WS_END)
    srd(k, 8, P('A_k'), 0x200000)
    srd(k, 12, P('A_v'), 0x200000)
    k(f"s_add_u32 m0, s23, {KT + 1024}")
    k("buffer_load_dwordx4 v2, s[8:11], s20 offen lds")
    k(f"s_add_u32 m0, s23, {VT}")
    k("buffer_load_dwordx4 v2, s[12:15], s20 offen lds")
    only_wave(k, 1, lambda: k(f"s_mov_b32 m0, {KT}\nbuffer_load_dwordx4 v8, s[8:11], 0 offen lds"))
    srd(k, 40, P('dbg'), 256)
    srd(k, 16, P('A_shift_k'), 4096)
    def lead():
        L = k.label("ld")
        k(f"""
        s_cmp_lg_u32 s5, 0
        s_cbranch_scc1 {L}
        s_or_b32 s3, s56, 1
        v_mov_b32 v{VS}, s3
        v_mov_b32 v{VS+1}, s57
        s_mov_b64 s[46:47], exec
        s_mov_b64 exec, 1
        buffer_store_dwordx2 v[{VS}:{VS+1}], v{VS+5}, s[40:43], 0 offen sc1
        s_mov_b64 exec, s[46:47]
        {L}:
        """)
    only_wave(k, 7, lead)
    k.vm("buffer_load_dwordx4 v[24:27], v6, s[16:19], 0 offen", "shk")
    k(f"""
    s_lshl_b32 s3, s36, 1
    s_load_dword s37, s[{P('A_ssm_D')}:{P('A_ssm_D')+1}], s3
    s_lshl_b32 s3, s36, 12
    """)
    srd_s(k, 32, P('A_ssm_k'), 8192, 3)
    srd(k, 16, P('c'), 1024)
    k(f"""
    s_lshr_b32 s38, s6, 2                ; c2
    s_mul_i32 s3, s38, {KC_CH - 4096}
    s_add_u32 s3, s3, s23
    s_add_u32 m0, s3, {KC + 7 * KC_CS + 16}
    v_lshlrev_b32 v44, 1, v0
    s_barrier
    """)
    def codepf():
        k(f"""
        s_getpc_b64 s[46:47]
        k1_pc:
        s_sub_u32 s46, s46, k1_pc-k1_kernel
        s_subb_u32 s47, s47, 0
        v_and_b32 v46, 15, v1
        s_lshl_b32 s3, s5, 4
        v_add_u32 v46, s3, v46
        v_lshlrev_b32 v46, 7, v46
        v_min_u32 v46, code_end-k1_kernel-4, v46
        global_load_dword v47, v46, s[46:47]
        """)
    if CODEPF: only_wave(k, 4, codepf)
    k.vm("buffer_load_dwordx4 v9, s[32:35], s23 offen lds", "kc0")
    k.vm("buffer_load_ushort v45, v44, s[16:19], 0 offen", "c")
    stamp(k)
    k(f"""
    v_lshrrev_b32 v37, 3, v0
    v_and_b32 v38, 7, v0
    v_mul_u32_u24 v39, 144, v37
    v_lshl_add_u32 v39, v38, 4, v39
    v_mul_u32_u24 v166, 6144, v37
    v_lshl_add_u32 v166, v38, 4, v166
    v_lshlrev_b32 v165, 2, v37
    v_lshlrev_b32 v37, 12, v37
    v_lshl_add_u32 v37, v38, 4, v37
    s_lshl_b32 s48, s4, 18
    s_lshl_b32 s7, s5, 7
    s_sub_u32 s48, s48, s7
    s_add_u32 s48, s48, {KVT + 3968}
    s_lshl_b32 s49, s4, 5
    s_add_u32 s49, s49, s5
    s_lshl_b32 s39, s49, 3
    s_add_u32 s39, s39, s6               ; q token = 256 j + 8 i + w
    s_mul_i32 s49, s4, 6
    s_add_u32 s49, s49, s5
    v_mul_u32_u24 v36, 288, v4
    v_lshlrev_b32 v38, 3, v5
    v_sub_u32 v36, v36, v38
    v_add_u32 v36, {TT + 120}, v36
    v_lshlrev_b32 v2, 9, v5
    v_lshl_add_u32 v2, v4, 2, v2
    v_add_u32 v3, {VT}, v2
    v_add_u32 v2, {KT + 5 * 128}, v2
    v_mov_b32 v116, 0
    v_mov_b32 v117, 0
    v_mov_b32 v118, 0
    v_mov_b32 v119, 0
    v_lshrrev_b32 v112, 5, v1
    v_mul_u32_u24 v112, {UR_CH}, v112
    v_and_b32 v113, 31, v1
    v_lshl_add_u32 v112, v113, 4, v112
    v_and_b32 v113, 15, v1
    v_mul_u32_u24 v113, {KC_CS}, v113
    v_lshlrev_b32 v167, 7, v1
    """)
    srd(k, 8, P('A_q'), 0x200000)
    srd(k, 52, P('w_mod'), 512 * 6144)
    srd(k, 56, P('B_w1'), 0x80000)
    srd(k, 60, P('B_w2'), 0x80000)
    only_wave(k, 1, lambda: k(f"ds_write_b128 v112, v[116:119] offset:{UR + 4096}"))
    only_wave(k, 2, lambda: k(f"ds_write_b128 v113, v[116:119] offset:{KC}"))
    k.wait_vm("shk")
    k("s_barrier")
    stamp(k)
    k(f"""
    ds_read2_b32 v[10:11], v2 offset0:0 offset1:32
    ds_read2_b32 v[12:13], v2 offset0:64 offset1:96
    ds_read2_b32 v[14:15], v2 offset0:128 offset1:160
    ds_read_b32 v16, v2 offset:768
    ds_read2_b32 v[18:19], v3 offset0:0 offset1:32
    ds_read2_b32 v[20:21], v3 offset0:64 offset1:96
    """)
    def tbl():
        k(f"buffer_load_dwordx2 v[{VS}:{VS+1}], v{VS+5}, s[40:43], 0 offen sc1")
        k(f"v_and_b32 v{VS+4}, 1, v1\nv_lshlrev_b32 v{VS+4}, 7, v{VS+4}\nbuffer_load_dword v{VS+3}, v{VS+4}, s[28:31], s26 offen sc1")
    only_wave(k, 0, tbl)
    unpack(k, 62, 64, 24); unpack(k, 66, 68, 25); unpack(k, 63, 65, 26); unpack(k, 67, 69, 27)
    k("s_waitcnt lgkmcnt(0)")
    for r in range(7): unpack(k, 110 + 2 * r, 111 + 2 * r, 10 + r)
    for r in range(4): k(f"v_pk_mul_f32 {pr(70+2*r)}, {pr(110+2*(r+3))}, {pr(62)}")
    for tau in range(1, 4):
        for r in range(4):
            k(f"v_pk_fma_f32 {pr(70+2*r)}, {pr(110+2*(r+3-tau))}, {pr(62+2*tau)}, {pr(70+2*r)}")
    for r in range(4): unpack(k, 54 + 2 * r, 55 + 2 * r, 18 + r)
    for r in range(4): k(f"v_pk_mul_f32 {pr(70+2*r)}, {pr(70+2*r)}, {pr(54+2*r)}")
    k(f"""
    v_cvt_pk_bf16_f32 v40, v76, v74
    v_cvt_pk_bf16_f32 v41, v72, v70
    v_cvt_pk_bf16_f32 v42, v77, v75
    v_cvt_pk_bf16_f32 v43, v73, v71
    ds_write_b64 v36, v[40:41]
    ds_write_b64 v36, v[42:43] offset:144
    s_waitcnt lgkmcnt(0)
    s_barrier
    ds_read_b128 v[40:43], v39 offset:{TT}
    s_waitcnt lgkmcnt(0)
    buffer_store_dwordx4 v[40:43], v37, s[28:31], s48 offen sc1
    """)
    stamp(k)
    srd(k, 12, P('ws'), Y2B_SZ, Y2B)
    k(f"""
    v_lshrrev_b32 v3, 8, v0
    v_mul_u32_u24 v3, {UR_CH}, v3
    v_and_b32 v4, 255, v0
    v_lshl_add_u32 v3, v4, 4, v3
    v_add_u32 v12, {UR}, v3
    v_and_b32 v28, 15, v1
    v_lshrrev_b32 v29, 4, v1
    v_and_b32 v2, 7, v28
    v_mul_u32_u24 v2, {KC_CS}, v2
    v_lshrrev_b32 v3, 3, v28
    v_add_u32 v3, v3, v29
    v_lshl_add_u32 v2, v3, 4, v2
    s_mul_i32 s3, s38, {KC_CH}
    s_add_u32 s3, s3, {KC}
    v_add_u32 v2, s3, v2                 ; A addr
    s_mul_i32 s3, s38, {UR_CH}
    s_add_u32 s3, s3, {UR + 480}
    v_lshlrev_b32 v3, 4, v29
    v_lshlrev_b32 v4, 5, v28
    v_sub_u32 v3, v3, v4
    v_add_u32 v3, s3, v3                 ; B addr
    s_add_u32 s3, s3, {4088 - 3584 - 480}
    v_lshlrev_b32 v6, 3, v29
    v_add_u32 v6, v6, v4
    v_sub_u32 v6, s3, v6
    s_lshl_b32 s3, s6, 11
    v_lshl_add_u32 v4, v1, 4, s3
    s_xor_b32 s3, s3, 4096
    v_lshl_add_u32 v5, v1, 4, s3
    v_add_u32 v4, {KT}, v4
    v_add_u32 v5, {KT}, v5
    v_lshrrev_b32 v26, 1, v29
    v_lshl_add_u32 v26, v28, 1, v26      ; blk8 = 2 n + (g4>>1)
    v_lshlrev_b32 v26, 13, v26
    v_and_b32 v27, 1, v29
    v_lshl_add_u32 v26, v27, 3, v26
    s_add_u32 s24, s36, s38
    s_lshl_b32 s24, s24, 4
    s_lshl_b32 s3, s37, 16
    s_and_b32 s7, s37, 0xffff0000
    s_cmp_eq_u32 s38, 0
    s_cselect_b32 s3, s3, s7
    v_mov_b32 v24, s3                    ; D
    v_lshlrev_b32 v13, 4, v0
    s_lshl_b32 s20, s36, 12
    s_add_u32 s20, s20, {KVT}
    v_add_u32 v14, {KC + 7 * KC_CS}, v9
    v_add_u32 v15, {KC + 7 * KC_CS + KC_CH}, v9
    s_waitcnt vmcnt(0) lgkmcnt(0)
    s_barrier
    """)
    stamp(k)
    k.vm_log = []
    LJ = k.label("cj")
    labs = [k.label(f"cp{w}_") for w in range(8)]
    for w in range(1, 8):
        k(f"s_cmp_eq_u32 s6, {w}\ns_cbranch_scc1 {labs[w]}")
    LN1 = k.label("nn"); LN2 = k.label("nd")
    k(f"""
    s_mov_b32 s45, 0
    {LN1}:
    v_cmp_eq_u32 vcc, 0, v{VS}
    s_cbranch_vccz {LN2}
    s_add_u32 s45, s45, 1
    s_cmp_gt_u32 s45, {SPIN_MAX}
    s_cbranch_scc1 {LN2}
    buffer_load_dwordx2 v[{VS}:{VS+1}], v{VS+5}, s[40:43], 0 offen sc1
    s_waitcnt vmcnt(0)
    s_branch {LN1}
    {LN2}:
    """)
    sync_signal(k, VS, 27)
    stamp(k)
    sync_poll(k, VS, 26, 32, 0)
    k(f"s_branch {LJ}")
    for w in range(1, 8):
        a = w - 1; sft = 7 - a
        k(f"{labs[w]}:")
        k(f"v_add_u32 v16, {KC + a * KC_CS + 16}, v9\nv_add_u32 v17, {KC + a * KC_CS + 16 + KC_CH}, v9")
        for half in range(2):
            for q in range(4):
                b = 48 + 8 * (4 * half + q)
                k(f"ds_read_b128 {q4(b)}, v{14+half} offset:{1024*q}")
                k(f"ds_read_b128 {q4(b+4)}, v{14+half} offset:{1024*q + 16}")
                if half == 1 and q == 2: k("s_waitcnt lgkmcnt(8)")
        for n in range(8):
            half, q = divmod(n, 4)
            b = 48 + 8 * n
            if n == 0: k("s_waitcnt lgkmcnt(8)")
            if n == 4: k("s_waitcnt lgkmcnt(4)")
            off = 16 - 2 * sft
            x = off // 4
            if off % 4 == 0:
                if (b + x) % 2 == 0:
                    k(f"ds_write_b128 v{16+half}, {q4(b+x)} offset:{1024*q}")
                else:
                    for i in range(4): k(f"v_mov_b32 v{116+4*(n%2)+i}, v{b+x+i}")
                    k(f"ds_write_b128 v{16+half}, {q4(116+4*(n%2))} offset:{1024*q}")
            else:
                for i in range(4): k(f"v_alignbit_b32 v{116+4*(n%2)+i}, v{b+x+i+1}, v{b+x+i}, 16")
                k(f"ds_write_b128 v{16+half}, {q4(116+4*(n%2))} offset:{1024*q}")
        if w < 7: k(f"s_branch {LJ}")
    k(f"{LJ}:")
    stamp(k, 5)
    k("s_barrier")
    stamp(k)
    k("buffer_load_dwordx4 v[20:23], v13, s[28:31], s20 offen sc1")
    k(f"""
    v_lshlrev_b32 v45, 16, v45
    v_mul_f32 v46, {hx(-LOG2E)}, v45
    v_exp_f32 v46, v46
    v_add_f32 v46, 1.0, v46
    v_rcp_f32 v46, v46
    v_mul_f32 v45, v45, v46
    v_cvt_pk_bf16_f32 v45, v45, v45
    v_lshlrev_b32 v45, 16, v45
    v_lshlrev_b32 v44, 2, v0
    ds_write_b32 v44, v45 offset:{XS}
    s_lshl_b32 s22, s39, 10
    s_barrier
    buffer_load_dwordx4 v[160:163], v9, s[8:11], s22 offen
    """)
    LM = k.label("mw"); LN = k.label("mn")
    k(f"""
    s_lshl_b32 s21, s49, 7
    s_cmp_ge_u32 s5, 6
    s_cbranch_scc1 {LM}
    s_waitcnt vmcnt(1)
    s_branch {LN}
    {LM}:
    ; pieces: p = (i-6)*7 + w (w<7): p<48 -> w_mod touch (cb = 6j + p/8, rows 64 (p%8)..) ; 48..111 w1 ; 112..175 w2
    s_sub_u32 s3, s5, 6
    s_mul_i32 s7, s6, 26
    s_add_u32 s3, s3, s7                 ; p = w*26 + (i-6)   (0..207)
    s_cmp_ge_u32 s3, 48
    s_cbranch_scc1 {LM}a
    s_lshr_b32 s7, s3, 3
    s_mul_i32 s46, s4, 6
    s_add_u32 s7, s7, s46
    s_lshl_b32 s7, s7, 7
    s_and_b32 s3, s3, 7
    s_mul_i32 s3, s3, {64*6144}
    s_add_u32 s3, s3, s7
    v_mul_u32_u24 v174, 6144, v1
    buffer_load_dword v175, v174, s[52:55], s3 offen
    s_branch {LM}z
    {LM}a:
    s_sub_u32 s3, s3, 48
    s_lshl_b32 s3, s3, 13
    s_cmp_ge_u32 s3, 0x80000
    s_cbranch_scc1 {LM}b
    buffer_load_dword v175, v167, s[56:59], s3 offen
    s_branch {LM}z
    {LM}b:
    s_sub_u32 s3, s3, 0x80000
    buffer_load_dword v175, v167, s[60:63], s3 offen
    {LM}z:
    s_waitcnt vmcnt(2)
    {LN}:
    ds_write_b128 v12, v[20:23]
    """)
    only_wave(k, 0, lambda: sync_gflush(k, VS, 0))
    k(f"""
    s_waitcnt lgkmcnt(0)
    s_barrier
    """)
    stamp(k)
    labs = [k.label(f"cv{x}_") for x in range(4)]
    Lend = k.label("cvend")
    k(f"""
    s_and_b32 s3, s6, 3
    s_cmp_eq_u32 s3, 1
    s_cbranch_scc1 {labs[1]}
    s_cmp_eq_u32 s3, 2
    s_cbranch_scc1 {labs[2]}
    s_cmp_eq_u32 s3, 3
    s_cbranch_scc1 {labs[3]}
    """)
    for x in range(4):
        if x: k(f"{labs[x]}:\ns_nop 7\ns_nop 7")
        conv_body(k, x & 1, x >> 1)
        if x < 3: k(f"s_branch {Lend}")
    k(f"{Lend}:\ns_nop 7\ns_waitcnt vmcnt(2)")
    stamp(k)
    dot_stats(k, 46, range(160, 164), True)
    allreduce(k, 46, (1, 2, 4, 8))
    stats_finish(k, 46, 48)
    k(f"""
    s_lshl_b32 s3, s39, 3
    s_add_u32 s3, s3, {QST}
    v_mov_b32 v50, 0
    s_mov_b64 s[46:47], exec
    s_mov_b64 exec, 1
    buffer_store_dwordx2 v[48:49], v50, s[28:31], s3 offen
    s_mov_b64 exec, s[46:47]
    """)
    def zf():
        k(f"""
        s_add_u32 s3, s27, 8192
        v_mov_b32 v52, s3
        s_and_b32 s3, s5, 7
        s_lshl_b32 s3, s3, 3
        s_lshr_b32 s7, s5, 3
        s_lshl_b32 s46, s4, 2
        s_add_u32 s7, s7, s46
        s_lshl_b32 s7, s7, 8
        s_add_u32 s3, s3, s7
        s_add_u32 s3, s3, {FLAGS + 16384}
        v_writelane_b32 v52, s3, 1
        s_and_b32 s3, s5, 15
        s_lshl_b32 s3, s3, 3
        s_lshr_b32 s7, s5, 4
        s_lshl_b32 s46, s4, 1
        s_add_u32 s7, s7, s46
        s_lshl_b32 s7, s7, 8
        s_add_u32 s3, s3, s7
        s_add_u32 s3, s3, {FLAGS + 24576}
        v_writelane_b32 v52, s3, 2
        s_add_u32 s3, s3, 8192
        v_writelane_b32 v52, s3, 3
        s_lshl_b32 s3, s4, 5
        s_add_u32 s3, s3, s5
        s_lshl_b32 s3, s3, 7
        s_add_u32 s3, s3, {GFL + 32768}
        v_writelane_b32 v52, s3, 4
        s_add_u32 s3, s3, 32768
        v_writelane_b32 v52, s3, 5
        s_add_u32 s3, s3, 32768
        v_writelane_b32 v52, s3, 6
        s_add_u32 s3, s3, 32768
        v_writelane_b32 v52, s3, 7
        v_mov_b32 v51, 0
        s_mov_b64 s[46:47], exec
        s_mov_b64 exec, 255
        buffer_store_dwordx2 v[50:51], v52, s[28:31], 0 offen
        s_mov_b64 exec, s[46:47]
        """)
    only_wave(k, 1, zf)
    LE = k.label("mend"); LT = k.label("mtw")
    k(f"s_cmp_ge_u32 s5, 6\ns_cbranch_scc1 {LT}")
    for a in range(8): k(f"ds_read_b32 v{64+2*a}, v165 offset:{XS + 256*a}")
    k(f"""
    v_and_b32 v52, 7, v1
    v_lshlrev_b32 v52, 5, v52
    v_lshrrev_b32 v53, 4, v1
    v_lshl_add_u32 v52, v53, 3, v52
    s_lshl_b32 s3, s6, 8
    s_add_u32 s3, s3, {MP + 2048}
    v_add_u32 v52, s3, v52
    s_waitcnt lgkmcnt(0)
    """)
    for a in range(8):
        for e in range(4):
            t = 88 + 2 * ((4 * a + e) % 4)
            unpack(k, t, t + 1, 176 + 4 * a + e)
            if a == 0: k(f"v_pk_mul_f32 {pr(80+2*e)}, {pr(t)}, {pr(64)} op_sel_hi:[1,0]")
            else: k(f"v_pk_fma_f32 {pr(80+2*e)}, {pr(t)}, {pr(64+2*a)}, {pr(80+2*e)} op_sel_hi:[1,0,1]")
    for i in range(4): k(f"v_permlane32_swap_b32 v{80+i}, v{84+i}")
    for i in range(4): k(f"v_add_f32 v{80+i}, v{80+i}, v{84+i}")
    for i in range(2): k(f"v_permlane16_swap_b32 v{80+i}, v{82+i}")
    for i in range(2): k(f"v_add_f32 v{80+i}, v{80+i}, v{82+i}")
    for i in range(2): k(f"v_add_f32_dpp v{80+i}, v{80+i}, v{80+i} row_ror:8 row_mask:0xf bank_mask:0xf")
    k(f"""
    ds_write_b64 v52, v[80:81]
    s_waitcnt lgkmcnt(0)
    s_barrier
    s_cmp_lg_u32 s6, 0
    s_cbranch_scc1 {LE}
    v_lshlrev_b32 v52, 2, v1
    """)
    for w in range(8): k(f"ds_read_b32 v{64+w}, v52 offset:{MP + 2048 + 256*w}")
    k(f"""
    s_lshr_b32 s3, s49, 3                ; vector
    s_cmp_eq_u32 s3, 1
    s_cselect_b32 s7, 1.0, 0
    s_cmp_eq_u32 s3, 4
    s_cselect_b32 s7, 1.0, s7
    s_lshl_b32 s3, s49, 8
    s_add_u32 s3, s3, {MODC}
    s_waitcnt lgkmcnt(0)
    v_add_f32 v64, v64, v65
    v_add_f32 v66, v66, v67
    v_add_f32 v68, v68, v69
    v_add_f32 v70, v70, v71
    v_add_f32 v64, v64, v66
    v_add_f32 v68, v68, v70
    v_add_f32 v64, v64, v68
    v_cvt_pk_bf16_f32 v64, v64, v64
    v_lshlrev_b32 v64, 16, v64
    v_add_f32 v64, s7, v64
    v_cvt_pk_bf16_f32 v64, v64, v64
    v_lshlrev_b32 v64, 16, v64
    buffer_store_dword v64, v52, s[28:31], s3 offen
    s_branch {LE}
    {LT}:
    """)
    if TAILWARM:
        k(f"""
        s_sub_u32 s3, s5, 6
        s_mul_i32 s7, s6, 26
        s_add_u32 s3, s3, s7
        s_lshl_b32 s3, s3, 3
        s_add_u32 s3, s3, s4
        s_cmp_ge_u32 s3, 448
        s_cbranch_scc1 {LE}
        s_cmp_lt_u32 s3, 224
        s_cselect_b32 s52, s{P('B_w3')}, s{P('B_w4')}
        s_cselect_b32 s53, s{P('B_w3')+1}, s{P('B_w4')+1}
        s_cselect_b32 s7, 0, 224
        s_sub_u32 s3, s3, s7
        s_lshl_b32 s3, s3, 13
        s_mov_b32 s54, {1792 * 1024}
        buffer_load_dword v175, v167, s[52:55], s3 offen
        """)
    k(f"{LE}:")
    finish(k, 0)
    return k

YX = 131072; CONSTL = 122880
K2_LDS = 163840

def gelu_items(k, regs, tmp, c1):
    n = len(regs); L = []
    for i, r in enumerate(regs): L.append(f"v_pk_mul_f32 {pr(tmp+2*i)}, {pr(r)}, {pr(r)}")
    for i, r in enumerate(regs): L.append(f"v_pk_fma_f32 {pr(tmp+2*i)}, {pr(tmp+2*i)}, s[52:53], {pr(c1)} op_sel_hi:[1,1,0]")
    for i, r in enumerate(regs): L.append(f"v_pk_mul_f32 {pr(tmp+2*i)}, {pr(tmp+2*i)}, {pr(r)}")
    for i in range(2 * n): L.append(f"v_exp_f32 v{tmp+i}, v{tmp+i}")
    for i, r in enumerate(regs): L.append(f"v_pk_add_f32 {pr(tmp+2*i)}, {pr(tmp+2*i)}, 1.0 op_sel_hi:[1,0]")
    for i in range(2 * n): L.append(f"v_rcp_f32 v{tmp+i}, v{tmp+i}")
    for i, r in enumerate(regs): L.append(f"v_pk_mul_f32 {pr(r)}, {pr(r)}, {pr(tmp+2*i)}")
    return L

def gelu_items_s(regs, tmp, vc2):
    L = []
    for i, r in enumerate(regs): L.append(f"v_mul_f32 v{tmp+i}, v{r}, v{r}")
    for i, r in enumerate(regs): L.append(f"v_fmaak_f32 v{tmp+i}, v{tmp+i}, v{vc2}, {hx(GC1)}")
    for i, r in enumerate(regs): L.append(f"v_mul_f32 v{tmp+i}, v{tmp+i}, v{r}")
    for i, r in enumerate(regs): L.append(f"v_exp_f32 v{tmp+i}, v{tmp+i}")
    for i, r in enumerate(regs): L.append(f"v_add_f32 v{tmp+i}, 1.0, v{tmp+i}")
    for i, r in enumerate(regs): L.append(f"v_rcp_f32 v{tmp+i}, v{tmp+i}")
    for i, r in enumerate(regs): L.append(f"v_mul_f32 v{r}, v{r}, v{tmp+i}")
    return L

def w64_dma_lane(k, dst, rowbytes, t1):
    k(f"""
    v_lshrrev_b32 v{t1}, 3, v1
    v_mul_u32_u24 v{dst}, {rowbytes}, v{t1}
    v_lshrrev_b32 v{t1}, 4, v1
    v_lshlrev_b32 v{t1}, 1, v{t1}
    v_xor_b32 v{t1}, v{t1}, v1
    v_and_b32 v{t1}, 7, v{t1}
    v_lshl_add_u32 v{dst}, v{t1}, 4, v{dst}
    """)
def w64_tr_lane(k, dst, t1, t2):
    k(f"""
    v_lshrrev_b32 v{t1}, 2, v1
    v_lshlrev_b32 v{dst}, 7, v{t1}
    v_and_b32 v{t1}, 6, v{t1}
    v_bfe_u32 v{t2}, v1, 1, 1
    v_add_u32 v{t1}, v{t1}, v{t2}
    v_lshl_add_u32 v{dst}, v{t1}, 4, v{dst}
    v_and_b32 v{t2}, 1, v1
    v_lshl_add_u32 v{dst}, v{t2}, 3, v{dst}
    """)

def kernel_2():
    k = KK("k2_kernel", vgpr=254, sgpr=100)
    VS = 248
    V_L16 = 232; V_D1K = 233; V_D35 = 234; V_TR = 235; V_GC1 = 236
    V_X1 = 240; V_X1P = 244
    CA = 122880
    YP = CA + 10240; YH = YP + 8192; QP = YH + 8192
    SX = CA; SH = SX + 8192; S1 = SH + 8192; ST = S1 + 8192
    EX = 131072
    bc = "op_sel:[0,0,1] op_sel_hi:[1,0,1]"
    entry(k)
    k(f"""
    s_mov_b32 s51, {ONES}
    s_lshr_b32 s25, s6, 2
    s_and_b32 s26, s6, 3
    s_lshl_b32 s23, s6, 10
    v_lshlrev_b32 v{V_L16}, 4, v1
    s_lshl_b32 s48, s4, 5
    s_add_u32 s48, s48, s5              ; blk8
    s_lshl_b32 s20, s48, 13
    s_add_u32 s20, s20, s23
    s_lshl_b32 s3, s26, 6
    v_xor_b32 v2, s3, v{V_L16}
    s_cmp_eq_u32 s5, 0
    s_cselect_b32 s49, 1, 0             ; hq
    s_cselect_b32 s50, -4, 8
    s_cselect_b32 s21, -1, 1
    s_mul_i32 s21, s21, 8192
    v_and_b32 v4, 3, v1                 ; t
    v_lshrrev_b32 v5, 2, v1             ; c
    s_lshl_b32 s3, s6, 2
    s_cmp_eq_u32 s6, 2
    s_cselect_b32 s3, s50, s3
    s_lshl_b32 s22, s48, 3
    s_add_u32 s3, s3, s22
    v_add_u32 v7, s3, v4
    v_lshlrev_b32 v7, 3, v7
    s_waitcnt lgkmcnt(0)
    """)
    srd(k, 8, P('ws'), Y2B_SZ, Y2B)
    srd(k, 12, P('A_q'), 0x200000)
    srd(k, 28, P('ws'), WS_END)
    srd(k, 32, P('ws'), QST_SZ, QST)
    LH = k.label("nh"); LC = k.label("nc")
    k(f"""
    s_add_u32 m0, s23, {YP}
    buffer_load_dwordx4 v{V_L16}, s[8:11], s20 offen lds
    s_add_u32 m0, s23, {QP}
    buffer_load_dwordx4 v2, s[12:15], s20 offen lds
    s_add_u32 m0, s23, {CA}
    s_add_u32 s3, s23, {MODC}
    buffer_load_dwordx4 v{V_L16}, s[28:31], s3 offen lds
    buffer_load_dwordx2 v[42:43], v7, s[32:35], 0 offen
    s_cmp_lt_u32 s6, 6
    s_cbranch_scc1 {LC}
    s_add_u32 m0, s23, {CA + 2048}
    s_add_u32 s3, s23, {MODC + 2048}
    buffer_load_dwordx4 v{V_L16}, s[28:31], s3 offen lds
    {LC}:
    s_add_u32 s3, s5, 1
    s_and_b32 s24, s3, 30
    s_cmp_lg_u32 s24, 0
    s_cbranch_scc1 {LH}
    s_add_u32 s3, s20, s21
    v_add_u32 v8, s3, v{V_L16}
    s_add_u32 m0, s23, {YH}
    buffer_load_dwordx4 v8, s[8:11], 0 offen lds
    s_cmp_ge_u32 s6, 4
    s_cbranch_scc1 {LH}
    s_lshl_b32 s3, s50, 10
    s_add_u32 s3, s3, s20
    v_add_u32 v8, s3, v2
    s_add_u32 m0, s23, {QP + 8192}
    buffer_load_dwordx4 v8, s[12:15], 0 offen lds
    {LH}:
    """)
    stamp(k)
    srd(k, 16, P('B_w1'), 0x80000)
    srd(k, 12, P('B_w2'), 0x80000)
    w64_dma_lane(k, V_D1K, 1024, 8)
    k(f"""
    s_lshr_b32 s3, s5, 3
    s_lshl_b32 s54, s4, 2
    s_add_u32 s54, s54, s3              ; M2
    s_and_b32 s55, s5, 7                ; nt
    s_lshl_b32 s36, s6, 13
    s_lshl_b32 s3, s55, 7
    s_add_u32 s36, s36, s3
    v_mov_b32 v{VS}, 1
    v_mov_b32 v{VS+1}, 1
    s_mov_b32 s44, 0
    s_lshr_b32 s3, s5, 4
    s_lshl_b32 s56, s4, 1
    s_add_u32 s56, s56, s3              ; M3
    s_and_b32 s57, s5, 15               ; nt3
    s_lshl_b32 s27, s54, 2
    s_add_u32 s27, s27, s26
    s_mul_i32 s37, s6, 28672
    s_lshl_b32 s3, s57, 8
    s_add_u32 s37, s37, s3
    s_mul_i32 s38, s25, {28 * 32768}
    s_lshl_b32 s3, s26, 13
    s_add_u32 s38, s38, s3
    s_lshl_b32 s3, s55, 7
    s_add_u32 s38, s38, s3
    s_lshl_b32 s39, s26, 10
    v_and_b32 v8, 48, v1
    v_lshlrev_b32 v8, 1, v8
    v_lshl_add_u32 v8, v4, 3, v8
    v_bfe_u32 v9, v1, 2, 2
    v_add_u32 v8, v8, v9
    v_lshlrev_b32 v8, 4, v8
    s_lshl_b32 s3, s6, 3
    s_add_u32 s3, s3, {YP}
    s_lshl_b32 s7, s49, 3
    s_add_u32 s7, s7, {YH}
    s_cmp_eq_u32 s6, 2
    s_cselect_b32 s3, s7, s3
    v_add_u32 v44, s3, v8
    v_lshlrev_b32 v9, 2, v4
    v_xor_b32 v8, v5, v9
    v_lshlrev_b32 v8, 4, v8
    v_lshl_add_u32 v8, v4, 10, v8
    s_lshl_b32 s3, s6, 12
    s_add_u32 s3, s3, {QP}
    v_add_u32 v46, s3, v8
    v_lshlrev_b32 v48, 5, v5
    v_add_u32 v48, {CA}, v48
    v_lshrrev_b32 v8, 2, v5
    v_lshlrev_b32 v8, 9, v8
    v_and_b32 v9, 1, v5
    v_lshl_add_u32 v8, v9, 8, v8
    v_lshl_add_u32 v8, v4, 4, v8
    v_bfe_u32 v9, v5, 1, 1
    v_lshl_add_u32 v8, v9, 3, v8
    s_lshl_b32 s3, s6, 6
    s_add_u32 s3, s3, {SX}
    s_lshl_b32 s7, s49, 6
    s_add_u32 s7, s7, {SH}
    s_cmp_eq_u32 s6, 2
    s_cselect_b32 s3, s7, s3
    v_add_u32 v50, s3, v8
    s_lshl_b32 s3, s6, 6
    s_add_u32 s3, s3, {ST}
    v_lshl_add_u32 v51, v4, 4, s3
    s_add_u32 s3, s23, {SX}
    v_add_u32 v52, s3, v{V_L16}
    v_lshrrev_b32 v8, 3, v1
    v_and_b32 v9, 7, v1
    v_mul_u32_u24 v53, {XROWS * 16}, v8
    v_lshl_add_u32 v53, v9, 4, v53
    v_lshlrev_b32 v54, 8, v8
    v_lshl_add_u32 v54, v9, 4, v54      ; X1 lane
    s_mul_i32 s58, s4, {XL_G}
    s_add_u32 s58, s58, {XL}
    s_mul_i32 s3, s6, {8 * XROWS * 16}
    s_add_u32 s20, s58, s3
    s_lshl_b32 s3, s5, 7
    s_add_u32 s3, s3, 128
    s_add_u32 s21, s20, s3
    s_cmp_eq_u32 s5, 0
    s_cselect_b32 s3, 0, {264 * 16}
    s_add_u32 s20, s20, s3
    s_lshr_b32 s3, s48, 1
    s_lshl_b32 s3, s3, 14
    s_and_b32 s7, s48, 1
    s_lshl_b32 s7, s7, 7
    s_add_u32 s3, s3, s7
    s_lshl_b32 s7, s6, 11
    s_add_u32 s3, s3, s7
    s_add_u32 s59, s3, {X1}
    v_mov_b32 v{V_GC1}, {hx(GC1)}
    v_mov_b32 v{V_GC1+1}, {hx(GC2)}
    s_mov_b32 s52, {hx(GC2)}
    s_mov_b32 s53, {hx(GC2)}
    """)
    w64_dma_lane(k, V_D35, 3584, 8)
    w64_tr_lane(k, V_TR, 8, 9)
    srd(k, 60, P('B_w3'), 512 * 3584)
    k(f"s_cmp_ge_u32 s57, 14\ns_cselect_b32 s62, 0, s62")
    k(f"s_lshl_b32 s3, s25, 6\ns_lshl_b32 s22, s25, 15")
    for eta in range(4):
        k(f"s_xor_b32 s7, s3, {32 * eta}\nv_xor_b32 v{224+eta}, s7, v{V_TR}\nv_add_u32 v{224+eta}, s22, v{224+eta}")
    def flagtouch():
        k(f"""
        s_lshl_b32 s3, s4, 8
        s_add_u32 s3, s3, {FLAGS + 8192}
        v_mov_b32 v{VS+4}, s3
        s_add_u32 s3, s3, 128
        v_writelane_b32 v{VS+4}, s3, 1
        s_lshl_b32 s3, s54, 8
        s_add_u32 s3, s3, {FLAGS + 16384}
        v_writelane_b32 v{VS+4}, s3, 2
        s_lshl_b32 s3, s56, 8
        s_add_u32 s3, s3, {FLAGS + 24576}
        v_writelane_b32 v{VS+4}, s3, 3
        s_add_u32 s3, s3, 8192
        v_writelane_b32 v{VS+4}, s3, 4
        buffer_load_dword v{VS+3}, v{VS+4}, s[28:31], 0 offen sc1
        """)
    only_wave(k, 5, flagtouch)
    if MALLWARM:
        Lw = k.label("mw"); Lz = k.label("mz")
        k(f"""
        s_sub_u32 s3, s6, 3
        s_cmp_gt_u32 s3, 1
        s_cbranch_scc1 {Lw}
        s_mul_i32 s7, s2, 7168
        s_cmp_eq_u32 s6, 3
        s_cselect_b32 s8, s{P('B_w3')}, s{P('B_w4')}
        s_cselect_b32 s9, s{P('B_w3')+1}, s{P('B_w4')+1}
        s_add_u32 s8, s8, s7
        s_addc_u32 s9, s9, 0
        s_mov_b32 s10, 7168
        v_lshlrev_b32 v8, 7, v1
        buffer_load_dword v9, v8, s[8:11], 0 offen
        s_waitcnt vmcnt(1)
        s_branch {Lz}
        {Lw}:
        s_waitcnt vmcnt(1)
        s_cmp_eq_u32 s6, 5
        s_cbranch_scc1 {Lz}
        s_waitcnt vmcnt(0)
        {Lz}:
        s_barrier
        """)
    else:
        k("s_waitcnt vmcnt(0)\ns_barrier")
    stamp(k)
    def wdma(sr, base, a, tag):
        k(f"s_add_u32 m0, s23, {base + 8192 * a}\ns_add_u32 s7, s36, {65536 * a}")
        k.vm(f"buffer_load_dwordx4 v{V_D1K}, s[{sr}:{sr+3}], s7 offen lds", tag)
    LHELP = k.label("help"); LPJ = k.label("pj")
    k(f"s_cmp_ge_u32 s6, 3\ns_cbranch_scc1 {LHELP}")
    k("s_setprio 2")
    rds = []
    for i4 in range(4): rds.append(f"ds_read_b128 {q4(8+4*i4)}, v46 offset:{256*i4}")
    for i4 in range(4):
        for h in range(2): rds.append(f"ds_read_b64_tr_b16 {pr(24+4*i4+2*h)}, v44 offset:{2048*i4 + 64*h}")
    for r in rds: k(r)
    cr = []
    for n in range(8):
        for vec in range(3):
            cr.append(f"ds_read_b128 {q4(64+32*vec+4*n)}, v48 offset:{2048*vec + 512*(n//2) + 16*(n%2)}")
    for n in range(8): cr.append(f"ds_read_b128 {q4(160+4*n)}, v48 offset:{6144 + 512*(n//2) + 16*(n%2)}")
    k("s_waitcnt lgkmcnt(6)")
    for r in cr[:9]: k(r)
    ci = 9
    for p in range(16): unpack(k, 192 + 2 * p, 193 + 2 * p, 8 + p)
    for p in range(16):
        x = 192 + 2 * p; t = 56 + 4 * (p & 1)
        k(f"v_pk_fma_f32 {pr(t+2)}, {pr(x)}, v[42:43], v[42:43] {bc}")
        if p % 2 == 0: k(f"s_waitcnt lgkmcnt({ci - 3 * (p // 2 + 1)})")
        unpack(k, t, t + 1, 24 + p)
        k(f"""
        v_pk_fma_f32 {pr(t+2)}, {pr(t+2)}, {pr(96+2*p)}, {pr(64+2*p)}
        v_pk_mul_f32 {pr(t)}, {pr(t)}, {pr(128+2*p)}
        v_pk_fma_f32 {pr(x)}, {pr(t+2)}, {pr(t)}, {pr(x)}
        """)
        if p: k(f"v_cvt_pk_bf16_f32 v{8+p-1}, v{x-2}, v{x-1}")
        if p % 2 == 1:
            for _ in range(3):
                if ci < len(cr): k(cr[ci]); ci += 1
    k("v_cvt_pk_bf16_f32 v23, v222, v223")
    k("s_waitcnt lgkmcnt(6)")
    for n in range(8): k(f"ds_read_b128 {q4(128+4*n)}, v48 offset:{8192 + 512*(n//2) + 16*(n%2)}")
    def dots4(regs):
        regs = list(regs)
        for n, r in enumerate(regs):
            S = 40 if n % 2 == 0 else 56
            c0 = "0" if n < 2 else f"v{S}"; c1 = "0" if n < 2 else f"v{S+1}"
            k(f"v_dot2_f32_bf16 v{S}, v{r}, s51, {c0}\nv_dot2_f32_bf16 v{S+1}, v{r}, v{r}, {c1}")
        k("v_pk_add_f32 v[40:41], v[40:41], v[56:57]")
    dots4(range(8, 24))
    allreduce(k, 40, (4, 8))
    stats_finish(k, 40, 42)
    k("s_waitcnt lgkmcnt(0)")
    for p in range(16): k(f"v_pk_fma_f32 {pr(192+2*p)}, {pr(192+2*p)}, v[42:43], v[42:43] {bc}")
    for p in range(16): k(f"v_pk_fma_f32 {pr(192+2*p)}, {pr(192+2*p)}, {pr(128+2*p)}, {pr(160+2*p)}")
    for p in range(16): k(f"v_cvt_pk_bf16_f32 v{24+p}, v{192+2*p}, v{193+2*p}")
    k("v_mov_b32 v60, v42\nv_mov_b32 v61, v43\nv_mov_b32 v62, v42\nv_mov_b32 v63, v43")
    k("s_barrier")
    Lx = k.label("nx1")
    k(f"s_cmp_eq_u32 s6, 2\ns_cbranch_scc1 {Lx}")
    for i4 in range(4):
        for a in range(2): k(f"ds_write_b64 v50, {pr(8+4*i4+2*a)} offset:{16384 + 2048*i4 + 128*a}")
    k(f"ds_write_b128 v51, v[60:63]\n{Lx}:")
    dots4(range(24, 40))
    allreduce(k, 40, (4, 8))
    stats_finish(k, 40, 42)
    for p in range(16): k(f"v_pk_fma_f32 {pr(192+2*p)}, {pr(192+2*p)}, v[42:43], v[42:43] {bc}")
    k("s_waitcnt lgkmcnt(4)")
    for p in range(16):
        k(f"v_cvt_pk_bf16_f32 v{24+p}, v{192+2*p}, v{193+2*p}")
        if p % 2 == 1: k(f"ds_write_b64 v50, {pr(24+p-1)} offset:{2048*(p//4) + 128*((p//2)%2)}")
    k(f"s_setprio 0\ns_branch {LPJ}\n{LHELP}:")
    k(f"""
    s_sub_u32 s3, s6, 3
    s_lshl_b32 s40, s3, 10
    s_lshl_b32 s41, s3, 13
    s_lshl_b32 s3, s55, 7
    s_add_u32 s41, s41, s3
    """)
    for j in range(24):
        lo, hi = 5 * j, 5 * j + 4
        if hi < 64:
            k(f"s_add_u32 m0, s40, {5120*j}\ns_add_u32 s7, s41, {40960*j}\nbuffer_load_dwordx4 v{V_D1K}, s[16:19], s7 offen lds")
        elif lo >= 64:
            k(f"s_add_u32 m0, s40, {5120*j}\ns_add_u32 s7, s41, {40960*j - 524288}\nbuffer_load_dwordx4 v{V_D1K}, s[12:15], s7 offen lds")
        else:
            La = k.label("hx"); Lb = k.label("hy")
            k(f"""
            s_add_u32 m0, s40, {5120*j}
            s_cmp_eq_u32 s6, 7
            s_cbranch_scc1 {La}
            s_add_u32 s7, s41, {40960*j}
            buffer_load_dwordx4 v{V_D1K}, s[16:19], s7 offen lds
            s_branch {Lb}
            {La}:
            s_lshl_b32 s7, s55, 7
            buffer_load_dwordx4 v{V_D1K}, s[12:15], s7 offen lds
            {Lb}:
            """)
        if j == HELP_BAR: k("s_barrier")
    k("s_waitcnt vmcnt(11)")
    k(f"{LPJ}:")
    stamp(k)
    LH3 = k.label("nh3")
    k(f"""
    s_waitcnt lgkmcnt(0)
    s_barrier
    ds_read_b128 v[16:19], v52
    ds_read_b128 v[24:27], v52 offset:16384
    ds_read_b128 v[20:23], v52 offset:8192
    v_add_u32 v8, {ST}, v{V_L16}
    ds_read_b128 v[28:31], v8
    s_waitcnt lgkmcnt(3)
    buffer_store_dwordx4 v[16:19], v53, s[28:31], s21 offen sc1
    s_waitcnt lgkmcnt(1)
    buffer_store_dwordx4 v[24:27], v54, s[28:31], s59 offen sc1
    s_cmp_lg_u32 s24, 0
    s_cbranch_scc1 {LH3}
    buffer_store_dwordx4 v[20:23], v53, s[28:31], s20 offen sc1
    {LH3}:
    """)
    only_wave(k, 7, lambda: k(f"""
    s_lshl_b32 s3, s48, 7
    s_add_u32 s3, s3, {ST2}
    s_waitcnt lgkmcnt(0)
    s_mov_b64 s[46:47], exec
    s_mov_b64 exec, 0xff
    buffer_store_dwordx4 v[28:31], v{V_L16}, s[28:31], s3 offen sc1
    s_mov_b64 exec, s[46:47]
    """))
    for eta in range(4): k(f"v_mov_b32 v{56+eta}, v{224+eta}")
    k("s_waitcnt lgkmcnt(0)")
    stamp(k)
    def preread(addr, n0=0, n1=32, dst=64, hook=None):
        for phi in range(n0, n1):
            v, off = addr(phi)
            if phi - n0 >= 7:
                k("s_waitcnt lgkmcnt(12)")
                if hook: hook(phi - 7)
            k(f"ds_read_b64_tr_b16 {pr(dst+4*phi)}, v{v} offset:{off}")
            k(f"ds_read_b64_tr_b16 {pr(dst+4*phi+2)}, v{v} offset:{off + 2048}")
        if hook:
            k("s_waitcnt lgkmcnt(0)")
            for phi in range(n1 - 7, n1): hook(phi)
    preread(lambda phi: (56 + phi % 4, 4096 * (phi // 4)))
    k(f"""
    s_lshr_b32 s49, s55, 1
    s_lshr_b32 s3, s49, 1
    s_add_u32 s3, s3, 1
    s_sub_u32 s7, 0, s3
    s_bitcmp1_b32 s49, 0
    s_cselect_b32 s50, s3, s7               ; sh
    v_and_b32 v60, 15, v1
    v_lshrrev_b32 v62, 4, v1
    v_mul_u32_u24 v2, {XROWS * 16}, v62
    v_lshl_add_u32 v2, v60, 4, v2
    s_and_b32 s3, s27, 15
    s_lshl_b32 s3, s3, 4
    s_add_u32 s3, s3, s50
    s_add_u32 s3, s3, 8
    s_lshl_b32 s3, s3, 4
    s_add_u32 s20, s58, s3
    s_mul_i32 s3, s25, {8 * 4 * XROWS * 16}
    s_add_u32 s20, s20, s3
    s_lshl_b32 s3, s27, 4
    s_lshl_b32 s7, s55, 1
    s_add_u32 s3, s3, s7
    s_add_u32 s3, s3, s25
    s_lshl_b32 s48, s3, 10
    v_lshlrev_b32 v61, 3, v60
    v_lshlrev_b32 v62, 4, v62               ; g4*16
    s_lshl_b32 s3, s55, 8
    s_lshl_b32 s7, s25, 7
    s_add_u32 s49, s3, s7
    s_lshl_b32 s3, s6, 11
    s_add_u32 s3, s3, {EX}
    v_add_u32 v230, s3, v{V_L16}
    v_xor_b32 v231, 8192, v230
    s_lshl_b32 s58, s4, 8
    s_add_u32 s58, s58, {FLAGS + 8192}
    s_lshl_b32 s3, s5, 3
    s_add_u32 s59, s58, s3
    s_and_b32 s3, s5, 24
    s_sub_u32 s3, s3, 1
    v_min_u32 v{VS+4}, 9, v1
    v_add_u32 v{VS+4}, s3, v{VS+4}
    v_med3_i32 v3, v{VS+4}, 0, 31
    s_waitcnt vmcnt(0) lgkmcnt(0)
    s_barrier
    """)
    k.vm_log = []
    stamp(k)
    def sp(ph, nfl, first, idxreg=None):
        def f():
            sync_signal(k, VS, 59)
            sync_poll(k, VS, 58, nfl, ph, s_first=first, idxreg=idxreg)
        only_wave(k, 0, f)
        k("s_barrier")
        stamp(k)
    sp(1, 10, None, idxreg=3)
    W3R = [0, 65536]
    def w3dma(nh, a):
        k(f"s_add_u32 m0, s23, {W3R[nh] + 8192 * a}\ns_add_u32 s7, s37, {128 * nh + 8 * 28672 * a}")
        k.vm(f"buffer_load_dwordx4 v{V_D35}, s[60:63], s7 offen lds", f"w3")
    def gemm8():
        for ks in range(8):
            k.wait_vm(f"x{ks}")
            for eta in range(4):
                c = q4(40 + 4 * eta) if ks else "0"
                k(f"v_mfma_f32_16x16x32_bf16 {q4(40+4*eta)}, {q4(64+16*ks+4*eta)}, {q4(8+4*ks)}, {c}")
    for a in range(8):
        k.vm(f"buffer_load_dwordx4 {q4(8+4*a)}, v2, s[28:31], s20 offen sc1", f"x{a}")
        k(f"s_add_u32 s20, s20, {4 * XROWS * 16}")
    k(f"""
    s_lshl_b32 s3, s27, 4
    s_add_u32 s3, s3, s50
    v_add_u32 v3, s3, v60
    v_cmp_gt_u32 s[34:35], 2048, v3
    """.replace("v_cmp_gt_u32 s[34:35], 2048, v3", "v_cmp_gt_u32 vcc, 2048, v3"))
    gemm8()
    k(f"""
    ds_write_b128 v230, v[48:51]
    ds_write_b128 v230, v[52:55] offset:1024
    """)
    wdma(12, 65536, 7, 'w2')
    for a in range(8): w3dma(0, a)
    stamp(k)
    only_wave(k, 0, lambda: sync_gflush(k, VS, 1))
    k.wait_vm("w2")
    k(f"""
    s_add_u32 s21, s48, {HS}
    s_waitcnt lgkmcnt(0)
    s_barrier
    ds_read_b128 v[48:51], v231
    ds_read_b128 v[52:55], v231 offset:1024
    s_waitcnt lgkmcnt(0)
    """)
    for e in range(4): k(f"v_pk_add_f32 {pr(40+2*e)}, {pr(40+2*e)}, {pr(48+2*e)}")
    for l in gelu_items(k, [40, 42, 44, 46], 48, V_GC1): k(l)
    for e in range(4): k(f"v_cvt_pk_bf16_f32 v{48+e}, v{40+2*e}, v{41+2*e}")
    for e in range(4): k(f"v_cndmask_b32 v{48+e}, 0, v{48+e}, vcc")
    k(f"buffer_store_dwordx4 v[48:51], v{V_L16}, s[28:31], s21 offen sc1")
    stamp(k)
    for eta in range(4): k(f"v_add_u32 v{56+eta}, 65536, v{56+eta}")
    preread(lambda phi: (56 + phi % 4, 4096 * (phi // 4)))
    k(f"""
    s_lshl_b32 s3, s27, 4
    s_lshl_b32 s7, s25, 3
    s_add_u32 s3, s3, s7
    s_lshl_b32 s3, s3, 10
    s_add_u32 s20, s3, {HS}
    s_add_u32 s21, s20, 4096
    s_lshl_b32 s58, s54, 8
    s_add_u32 s58, s58, {FLAGS + 16384}
    s_lshl_b32 s3, s55, 3
    s_add_u32 s59, s58, s3
    s_and_b32 s24, s5, 24
    s_waitcnt vmcnt(0) lgkmcnt(0)
    s_barrier
    """)
    k.vm_log = []
    stamp(k)
    sp(2, 8, 24)
    for a in range(8):
        k.vm(f"buffer_load_dwordx4 {q4(8+4*a)}, v{V_L16}, s[28:31], s{20 + a // 4} offen offset:{1024*(a%4)} sc1", f"x{a}")
    k(f"s_add_u32 s3, s48, {X1}")
    k.vm(f"buffer_load_dwordx4 {q4(V_X1)}, v{V_L16}, s[28:31], s3 offen sc1", "ep")
    k(f"s_lshl_b32 s3, s27, 8\ns_add_u32 s3, s3, {ST2}\nv_lshlrev_b32 v59, 4, v60")
    k.vm(f"buffer_load_dwordx2 v[208:209], v59, s[28:31], s3 offen sc1", "ep")
    k(f"s_add_u32 s3, s49, {MODC + 6144}")
    for v in range(2):
        for e in range(2):
            k.vm(f"buffer_load_dwordx4 {q4(200-8*v+4*e)}, v62, s[28:31], s3 offen offset:{2048*v + 64*e}", "ep")
    gemm8()
    k(f"""
    ds_write_b128 v230, v[48:51]
    ds_write_b128 v230, v[52:55] offset:1024
    """)
    for a in range(8): w3dma(1, a)
    stamp(k)
    k(f"""
    v_lshlrev_b32 v4, 3, v60
    v_lshrrev_b32 v5, 5, v1
    v_lshl_add_u32 v4, v5, 2, v4
    v_and_b32 v5, 16, v1
    v_lshl_add_u32 v4, v5, 26, v4
    s_lshr_b32 s3, s48, 3
    s_add_u32 s20, s3, {STAT}
    s_add_u32 s21, s48, {X1P}
    """)
    k.wait_vm("ep")
    for e in range(4): unpack(k, 8 + 2 * e, 9 + 2 * e, V_X1 + e)
    for e in range(4): k(f"v_pk_fma_f32 {pr(8+2*e)}, {pr(8+2*e)}, v[208:209], v[208:209] {bc}")
    for e in range(4): k(f"v_pk_fma_f32 {pr(8+2*e)}, {pr(8+2*e)}, {pr(192+2*e)}, {pr(200+2*e)}")
    k(f"""
    s_waitcnt lgkmcnt(0)
    s_barrier
    ds_read_b128 v[48:51], v231
    ds_read_b128 v[52:55], v231 offset:1024
    """)
    for e in range(4): k(f"v_cvt_pk_bf16_f32 v{16+e}, v{8+2*e}, v{9+2*e}")
    for e in range(4): unpack(k, 8 + 2 * e, 9 + 2 * e, 16 + e)
    for e in range(4): k(f"v_pk_add_f32 {pr(40+2*e)}, {pr(40+2*e)}, {pr(8+2*e)}")
    k("s_waitcnt lgkmcnt(0)")
    for e in range(4): k(f"v_pk_add_f32 {pr(40+2*e)}, {pr(40+2*e)}, {pr(48+2*e)}")
    for e in range(4): k(f"v_cvt_pk_bf16_f32 v{V_X1P+e}, v{40+2*e}, v{41+2*e}")
    k.vm(f"buffer_store_dwordx4 {q4(V_X1P)}, v{V_L16}, s[28:31], s21 offen sc1", "st")
    dot_stats(k, 50, range(V_X1P, V_X1P + 4), True)
    k(f"""
    v_permlane32_swap_b32 v50, v51
    v_add_f32 v50, v50, v51
    v_mov_b32 v51, v50
    v_permlane16_swap_b32 v50, v51
    v_add_f32 v50, v50, v51
    """)
    k.vm("buffer_store_dword v50, v4, s[28:31], s20 offen sc1", "st")
    stamp(k)
    srd(k, 16, P('B_w4'), 1792 * 1024)
    k(f"""
    s_lshl_b32 s58, s56, 8
    s_add_u32 s58, s58, {FLAGS + 24576}
    s_lshl_b32 s3, s57, 3
    s_add_u32 s59, s58, s3
    s_and_b32 s24, s5, 16
    s_and_b32 s3, s26, 1
    s_lshl_b32 s3, s3, 6
    v_xor_b32 v56, s3, v{V_TR}
    s_lshr_b32 s3, s26, 1
    s_lshl_b32 s3, s3, 16
    v_add_u32 v56, s3, v56
    v_xor_b32 v57, 32, v56
    s_lshl_b32 s3, s25, 16
    v_add_u32 v58, s3, v{V_L16}
    s_lshl_b32 s21, s25, 16
    s_lshl_b32 s3, s26, 12
    s_add_u32 s21, s21, s3
    s_lshl_b32 s20, s56, 17
    s_add_u32 s20, s20, s21
    s_add_u32 s20, s20, {X1P}
    v_lshlrev_b32 v59, 3, v1
    s_lshl_b32 s22, s56, 14
    s_lshl_b32 s3, s6, 11
    s_add_u32 s22, s22, s3
    s_add_u32 s22, s22, {STAT}
    s_lshl_b32 s3, s6, 7
    s_add_u32 s3, s3, {K2_LDS - 1024}
    v_add_u32 v60, s3, v61
    s_lshl_b32 s3, s25, 9
    s_add_u32 s3, s3, {K2_LDS - 1024}
    v_add_u32 v61, s3, v61
    s_lshl_b32 s50, s56, 3
    s_lshl_b32 s3, s25, 2
    s_add_u32 s50, s50, s3
    s_mul_i32 s50, s50, 56
    s_lshl_b32 s3, s57, 2
    s_add_u32 s50, s50, s3
    s_add_u32 s50, s50, s26
    s_lshl_b32 s50, s50, 10
    s_add_u32 s50, s50, {H3}
    v_mov_b32 v8, {ONES}
    v_mov_b32 v9, {ONES}
    v_mov_b32 v10, {ONES}
    v_mov_b32 v11, {ONES}
    s_mul_i32 s32, s25, 12288
    s_add_u32 s32, s32, s39
    s_lshl_b32 s33, s25, 16
    s_add_u32 s33, s33, s39
    s_lshl_b32 s34, s25, 12
    s_add_u32 s34, s34, s39
    s_lshr_b32 s3, s5, 3
    s_lshl_b32 s3, s3, 1
    s_and_b32 s7, s6, 1
    s_add_u32 s3, s3, s7
    s_bfe_u32 s7, s6, 0x10001
    s_mul_i32 s7, s7, {896 * 1024}
    s_lshl_b32 s42, s55, 7
    s_add_u32 s7, s7, s42
    s_mul_i32 s42, s3, {28 * 1024}
    s_add_u32 s42, s42, s7
    s_lshl_b32 s43, s3, 15
    s_add_u32 s43, s43, s7
    s_add_u32 s43, s43, {224 * 1024}
    v_lshlrev_b32 v2, 10, v1
    v_mov_b32 v3, {OOB}
    s_cmp_lt_u32 s6, 4
    s_cselect_b32 s3, 0, 32
    v_cmp_le_u32 vcc, s3, v1
    v_cndmask_b32 v2, v2, v3, vcc
    """)
    k.wait_vm("w3")
    k("s_barrier")
    only_wave(k, 0, lambda: sync_gflush(k, VS, 2))
    amap = {}
    for j in range(3): amap[j] = (131072 + 4096 * j, 12288)
    for j in range(16): amap[3 + j] = (4096 * j, 65536)
    amap[19] = (131072 + 24576, 4096)
    for j in range(8): amap[20 + j] = amap[j]
    sb = {12288: 32, 65536: 33, 4096: 34}
    def w4dma(kap):
        A, B = amap[kap]
        k(f"s_add_u32 m0, s{sb[B]}, {A}\ns_add_u32 s7, s38, {32768 * kap}")
        k.vm(f"buffer_load_dwordx4 v{V_D1K}, s[16:19], s7 offen lds", f"w4_{kap}")
    def w4touch(n):
        if n == 2: k(f"s_add_u32 s42, s42, {15 * 32768}")
        k.vm(f"buffer_load_dword v3, v2, s[16:19], s{42+(n%2)} offen", "touch")
    def cs(phi):
        ks, e = divmod(phi, 2)
        c = q4(192 + 4 * e) if ks else "0"
        k(f"v_mfma_f32_16x16x32_bf16 {q4(192+4*e)}, {q4(64+4*phi)}, v[8:11], {c}")
    LI = k.label("idle3"); LG4 = k.label("g4")
    preread(lambda phi: (56 + phi % 2, 4096 * (phi // 2)), 0, 16)
    k("s_waitcnt vmcnt(0)\ns_barrier")
    k.vm_log = []
    stamp(k)
    only_wave(k, 0, lambda: sync_signal(k, VS, 59))
    k(f"s_cmp_ge_u32 s57, 14\ns_cbranch_scc1 {LI}")
    k("s_waitcnt lgkmcnt(0)")
    for phi in range(16, 32):
        k(f"ds_read_b64_tr_b16 {pr(64+4*phi)}, v{56 + phi % 2} offset:{4096 * (phi // 2)}")
        k(f"ds_read_b64_tr_b16 {pr(64+4*phi+2)}, v{56 + phi % 2} offset:{4096 * (phi // 2) + 2048}")
        cs(phi - 16)
        if phi >= 22: k("s_waitcnt lgkmcnt(12)")
    only_wave(k, 0, lambda: sync_poll(k, VS, 58, 16, 3, s_first=24))
    k("s_waitcnt lgkmcnt(0)\ns_barrier")
    stamp(k)
    def xdma(mu, a):
        if a == 0: k(f"s_add_u32 m0, s21, {16384 * mu}\ns_add_u32 s35, s20, {16384 * mu}")
        k.vm(f"buffer_load_dwordx4 v{V_L16}, s[28:31], s35 offen offset:{1024*a} sc1 lds", f"xs{mu}")
    for a in range(4): xdma(0, a)
    k("s_barrier")
    for a in range(4): xdma(1, a)
    for n in range(4): k.vm(f"buffer_load_dwordx2 {pr(40+2*n)}, v59, s[28:31], s22 offen offset:{512*n} sc1", "stat")
    for phi in range(16, 32): cs(phi)
    def do_stats():
        k.wait_vm("stat")
        k(f"""
        v_pk_add_f32 v[40:41], v[40:41], v[42:43]
        v_pk_add_f32 v[44:45], v[44:45], v[46:47]
        v_pk_add_f32 v[40:41], v[40:41], v[44:45]
        """)
        allreduce(k, 40, ())
        stats_finish(k, 40, 42)
        k("ds_write_b64 v60, v[42:43]")
    epi = []
    for mu in range(4):
        k.wait_vm(*([f"xs{mu}"] + (["w4_6"] if mu == 3 else [])), extra="lgkmcnt(0)")
        k("s_barrier")
        stamp(k)
        acc = 200 + 8 * (mu & 1)
        if mu == 3: only_wave(k, 0, lambda: sync_gflush(k, VS, 3))
        dm = []
        if mu == 0:
            for m in (2, 3): dm.append((lambda m: (lambda: [xdma(m, a) for a in range(4)]))(m))
            dm.append(lambda: w4touch(0))
        else:
            lo = 0 if mu == 1 else 3 + 4 * (mu - 1)
            dm += [(lambda kap: (lambda: w4dma(kap)))(kap) for kap in range(lo, 3 + 4 * mu)]
            if mu == 1: dm.append(lambda: w4touch(1))
            if mu == 2: dm.append(lambda: w4touch(2))
        if mu == 1:
            for m in range(4): k(f"ds_read_b64 {pr(216+2*m)}, v61 offset:{128*m}")
        D = 6
        def xr(ks): k(f"ds_read_b128 {q4(8+4*(ks%8))}, v58 offset:{16384*mu + 1024*ks}")
        for ks in range(D): xr(ks)
        for ks in range(16):
            k(f"s_waitcnt lgkmcnt({min(D, 16 - ks) - 1})")
            for e in range(2):
                c = q4(acc + 4 * e) if ks else "0"
                k(f"v_mfma_f32_16x16x32_bf16 {q4(acc+4*e)}, {q4(64+8*ks+4*e)}, {q4(8+4*(ks%8))}, {c}")
                for _ in range(3):
                    if epi and ks >= 1: epi.pop(0)()
            if ks + D < 16: xr(ks + D)
            if dm and ((mu == 0 and ks % 4 == 0) or (mu == 1 and ks >= 6) or (mu == 2 and ks >= 10) or (mu == 3 and ks % 2 == 0)): dm.pop(0)()
        while dm: dm.pop(0)()
        while epi: epi.pop(0)()
        if mu == 0: do_stats()
        st = 216 + 2 * mu
        items = []
        for p in range(8): items.append(f"v_mul_f32 v{40+p}, v{192+p}, v{st+1}")
        for p in range(8): items.append(f"v_fma_f32 v{acc+p}, v{acc+p}, v{st}, v{40+p}")
        items += gelu_items_s([acc + p for p in range(8)], 40, V_GC1 + 1)
        for p in range(4): items.append(f"v_cvt_pk_bf16_f32 v{48+p}, v{acc+2*p}, v{acc+2*p+1}")
        epi = [(lambda t: (lambda: k(t)))(t) for t in items]
        def st_(mu=mu):
            k(f"s_add_u32 s7, s50, {57344 * mu}")
            k.vm(f"buffer_store_dwordx4 v[48:51], v{V_L16}, s[28:31], s7 offen sc1", "h3")
        epi.append(st_)
    stamp(k)
    while epi: epi.pop(0)()
    k(f"s_mov_b32 s45, 1\ns_branch {LG4}\n{LI}:")
    only_wave(k, 0, lambda: sync_gflush(k, VS, 3))
    k(f"""
    s_and_b32 s3, s5, 1
    s_mul_i32 s3, s3, {28 * 32768}
    s_lshr_b32 s7, s5, 4
    s_mul_i32 s7, s7, {96 * 1024}
    s_add_u32 s3, s3, s7
    s_add_u32 s3, s3, {22 * 32768}
    """)
    srd_s(k, 8, P('B_w4'), 96 * 1024, 3)
    k(f"v_lshlrev_b32 v8, 7, v0\ns_waitcnt lgkmcnt(0)\ns_barrier")
    for kap in range(15): w4dma(kap)
    w4touch(2)
    for n in range(2): k(f"s_mov_b32 s3, {65536*n}\nbuffer_load_dword v{9+n}, v8, s[8:11], s3 offen")
    k(f"""
    s_waitcnt vmcnt(0)
    s_barrier
    s_mov_b32 s45, 0
    {LG4}:
    """)
    srd(k, 12, P('out'), 0x200000)
    k(f"s_lshl_b32 s3, s25, 6")
    for eta in range(4):
        k(f"s_xor_b32 s7, s3, {32 * eta}\nv_xor_b32 v{8+eta}, s7, v{V_TR}")
    k(f"s_mul_i32 s3, s25, 12288\ns_add_u32 s3, s3, 131072\ns_lshl_b32 s7, s25, 16\ns_lshl_b32 s35, s25, 12\ns_add_u32 s35, s35, 131072")
    for eta in range(4):
        k(f"v_add_u32 v{44+eta}, s3, v{8+eta}\nv_add_u32 v{52+eta}, s35, v{8+eta}\nv_add_u32 v{56+eta}, s7, v{8+eta}")
    def waddr(kap, eta):
        A, B = amap[kap]
        if B == 12288: return (44 + eta, A - 131072)
        if B == 65536: return (56 + eta, A)
        return (52 + eta, A - 131072)
    preread(lambda phi: waddr(phi // 4, phi % 4), 0, 28)
    k(f"""
    s_add_u32 s58, s58, 8192
    s_add_u32 s59, s59, 8192
    s_mul_i32 s20, s27, 56
    s_mul_i32 s3, s25, 28
    s_add_u32 s20, s20, s3
    s_lshl_b32 s20, s20, 10
    s_add_u32 s20, s20, {H3}
    s_waitcnt vmcnt(0)
    s_barrier
    """)
    k.vm_log = []
    stamp(k, 22)
    def sig4():
        L = k.label("ns")
        k(f"s_cmp_eq_u32 s45, 0\ns_cbranch_scc1 {L}")
        sync_signal(k, VS, 59)
        k(f"{L}:")
    only_wave(k, 0, sig4)
    k("s_waitcnt lgkmcnt(4)")
    preread(lambda phi: waddr(phi // 4, phi % 4), 28, 32)
    only_wave(k, 0, lambda: sync_poll(k, VS, 58, 14, 4, s_first=24))
    k("s_waitcnt lgkmcnt(0)\ns_barrier")
    stamp(k)
    def xreg(kap):
        kk = kap % 16
        return 8 + 4 * kk if kk < 8 else 192 + 4 * (kk - 8)
    def xl(kap):
        k(f"s_add_u32 s7, s20, {4096 * (kap // 4)}")
        k.vm(f"buffer_load_dwordx4 {q4(xreg(kap))}, v{V_L16}, s[28:31], s7 offen offset:{1024*(kap%4)} sc1", f"x{kap}")
    XD = 5; WD = 9
    for kap in range(2): xl(kap)
    k("s_barrier")
    for kap in range(2, XD): xl(kap)
    ACC = [40, 224, 236, 4]
    D = 6
    def rd(phi):
        kap, eta = divmod(phi, 4)
        if eta == 0 and kap in (15, 18, 21, 24, 26):
            last = {15: 17, 18: 20, 21: 23, 24: 25, 26: 27}[kap]
            k.wait_vm(f"w4_{last}")
            k("s_barrier")
        v, off = waddr(kap, eta)
        b = 64 + 4 * (phi % 8)
        k(f"ds_read_b64_tr_b16 {pr(b)}, v{v} offset:{off}")
        k(f"ds_read_b64_tr_b16 {pr(b+2)}, v{v} offset:{off + 2048}")
    for phi in range(112):
        kap, eta = divmod(phi, 4)
        if eta == 0: k.wait_vm(f"x{kap}")
        if phi >= 32:
            k(f"s_waitcnt lgkmcnt({2 * (min(D, 112 - phi) - 1)})")
            wb = 64 + 4 * (phi % 8)
        else: wb = 64 + 4 * phi
        c = q4(ACC[eta]) if kap else "0"
        k(f"v_mfma_f32_16x16x32_bf16 {q4(ACC[eta])}, {q4(wb)}, {q4(xreg(kap))}, {c}")
        if 32 <= phi + D < 112: rd(phi + D)
        if eta == 1 and kap + XD < 28: xl(kap + XD)
        if eta == 3 and 15 <= kap + WD < 28: w4dma(kap + WD)
        if phi == 96:
            k(f"s_add_u32 s7, s49, {MODC + 10240}")
            k.vm(f"buffer_load_dwordx4 v[128:131], v62, s[28:31], s7 offen", "gb")
            k.vm(f"buffer_load_dwordx4 v[132:135], v62, s[28:31], s7 offen offset:64", "gb")
        if STAMPS and phi % 32 == 31: stamp(k)
    k(f"""
    v_and_b32 v2, 15, v1
    v_lshlrev_b32 v2, 10, v2
    v_lshrrev_b32 v3, 4, v1
    v_lshl_add_u32 v2, v3, 3, v2
    s_lshl_b32 s20, s27, 14
    s_lshl_b32 s7, s55, 7
    s_add_u32 s20, s20, s7
    s_lshl_b32 s7, s25, 6
    s_add_u32 s20, s20, s7
    s_barrier
    ds_write_b128 v230, {q4(ACC[2])}
    ds_write_b128 v230, {q4(ACC[3])} offset:1024
    """)
    stamp(k)
    for e in range(4): unpack(k, 8 + 2 * e, 9 + 2 * e, V_X1P + e)
    for e in range(4): unpack(k, 16 + 2 * e, 17 + 2 * e, V_X1 + e)
    ap = [ACC[0], ACC[0] + 2, ACC[1], ACC[1] + 2]
    for e in range(4): k(f"v_pk_add_f32 {pr(ap[e])}, {pr(ap[e])}, {pr(8+2*e)}")
    k(f"""
    s_waitcnt lgkmcnt(0)
    s_barrier
    ds_read_b128 v[24:27], v231
    ds_read_b128 v[28:31], v231 offset:1024
    s_waitcnt vmcnt(0) lgkmcnt(0)
    """)
    for e in range(4): k(f"v_pk_add_f32 {pr(ap[e])}, {pr(ap[e])}, {pr(24+2*e)}")
    for e in range(4): k(f"v_pk_fma_f32 {pr(ap[e])}, {pr(ap[e])}, {pr(128+2*e)}, {pr(16+2*e)}")
    for e in range(4): k(f"v_cvt_pk_bf16_f32 v{8+e}, v{ap[e]}, v{ap[e]+1}")
    k(f"""
    buffer_store_dwordx2 v[8:9], v2, s[12:15], s20 offen
    buffer_store_dwordx2 v[10:11], v2, s[12:15], s20 offen offset:32
    """)
    only_wave(k, 0, lambda: sync_gflush(k, VS, 4))
    finish(k, 1)
    k("code_end:")
    return k

if __name__ == "__main__":
    if "stamps" in sys.argv: STAMPS = True
    if "slow" in sys.argv: FORCE_SLOW = True
    if "nocodepf" in sys.argv: CODEPF = False
    if "nomw" in sys.argv: MALLWARM = False
    if "expa" in sys.argv: EXPA = True
    if "tailwarm" in sys.argv: TAILWARM = True
    ks = [kernel_1(), kernel_2()]
    ls = [("k1_kernel", 256, 512, K1_LDS), ("k2_kernel", 256, 512, K2_LDS)]
    open(sys.argv[1], "w").write(build(ls, ks))
```
